```python
import torch

def _softmax(x, axis=-1):
    return torch.softmax(x, dim=axis)
def _gelu(x):
    return torch.nn.functional.gelu(x, approximate="tanh")
def _silu(x):
    return torch.nn.functional.silu(x)
def _sigmoid(x):
    return torch.sigmoid(x)
def _layernorm(x, axis=-1, eps=1e-5):
    m = x.mean(dim=axis, keepdim=True)
    v = x.var(dim=axis, keepdim=True, unbiased=False)
    return (x - m) / torch.sqrt(v + eps)
def _scatter_add(tgt, idx, src, axis=0):
    return tgt.clone().index_add_(axis, idx, src)
def _segment_sum(src, seg, n):
    out = torch.zeros((n,) + src.shape[1:], dtype=src.dtype)
    return out.index_add_(0, seg, src)
def _pad(x, pw):
    flat = tuple(v for pair in reversed(pw) for v in pair)
    return torch.nn.functional.pad(x, flat)

kernel_name = 'recurrent_scan__ssm_conv_s5__glu_gated_geglu__prompt'

def setup_inputs():

    _w = (lambda a: (lambda t: t.to(torch.bfloat16) if t.is_floating_point() else t)(torch.as_tensor(a)))
    def _A_setup():
        B, S, D = 1, 2048, 512
        P = D
        Lambda_re = -0.5 * (lambda _x: torch.exp(torch.as_tensor(_x)))((lambda *s: torch.randn(*s, dtype=torch.bfloat16) * 0.8)(P))
        Lambda_im = (lambda *s: torch.randn(*s, dtype=torch.bfloat16) * 0.8)(P) * 1.0
        B_re = (lambda *s: torch.randn(*s, dtype=torch.bfloat16) * 1.6)(P, D) * (D ** -0.5)
        B_im = (lambda *s: torch.randn(*s, dtype=torch.bfloat16) * 0.8)(P, D) * (D ** -0.5)
        C_re = (lambda *s: torch.randn(*s, dtype=torch.bfloat16) * 1.6)(D, P) * (P ** -0.5)
        C_im = (lambda *s: torch.randn(*s, dtype=torch.bfloat16) * 1.6)(D, P) * (P ** -0.5)
        log_dt = (lambda *s: torch.randn(*s, dtype=torch.bfloat16) * 0.8)(P) * 0.3 - 2.0
        Dskip = (lambda *s: torch.randn(*s, dtype=torch.bfloat16) * 0.8)(D)
        return {
            "x": _w((lambda *s: torch.randn(*s, dtype=torch.bfloat16) * 0.05)(B, S, D)),
            "Lambda_re": _w(Lambda_re),
            "Lambda_im": _w(Lambda_im),
            "B_re": _w(B_re),
            "B_im": _w(B_im),
            "C_re": _w(C_re),
            "C_im": _w(C_im),
            "log_dt": _w(log_dt),
            "Dskip": _w(Dskip),
        }
    _A_in = _A_setup()

    def _B_setup():
        B, S, Dm, Df = 1, 2048, 512, 1376
        return {
            "x": _w((lambda *s: torch.randn(*s, dtype=torch.bfloat16) * 0.05)(B, S, Dm)),
            "w_gate": _w((lambda *s: torch.randn(*s, dtype=torch.bfloat16) * 0.2)(Dm, Df) * (Dm ** -0.5)),
            "w_up": _w((lambda *s: torch.randn(*s, dtype=torch.bfloat16) * 0.2)(Dm, Df) * (Dm ** -0.5)),
            "w_down": _w((lambda *s: torch.randn(*s, dtype=torch.bfloat16) * 0.2)(Df, Dm) * (Df ** -0.5)),
        }
    _B_in = _B_setup()

    return {
        "A_x": _A_in["x"],
        "A_Lambda_re": _A_in["Lambda_re"],
        "A_Lambda_im": _A_in["Lambda_im"],
        "A_B_re": _A_in["B_re"],
        "A_B_im": _A_in["B_im"],
        "A_C_re": _A_in["C_re"],
        "A_C_im": _A_in["C_im"],
        "A_log_dt": _A_in["log_dt"],
        "A_Dskip": _A_in["Dskip"],
        "B_x": _B_in["x"],
        "B_w_gate": _B_in["w_gate"],
        "B_w_up": _B_in["w_up"],
        "B_w_down": _B_in["w_down"],
    }

def reference(A_x, A_Lambda_re, A_Lambda_im, A_B_re, A_B_im, A_C_re, A_C_im, A_log_dt, A_Dskip, B_x, B_w_gate, B_w_up, B_w_down):
    def _A_ref(x, Lambda_re, Lambda_im, B_re, B_im, C_re, C_im, log_dt, Dskip):
        Bsz, L, H = x.shape
        Lam = Lambda_re + 1j * Lambda_im
        Bmat = B_re + 1j * B_im
        Cmat = C_re + 1j * C_im
        dt = torch.exp(log_dt)
        Lam_bar = torch.exp(dt * Lam)
        B_bar = ((Lam_bar - 1.0) / Lam)[:, None] * Bmat
        Bu = torch.einsum("bld,pd->blp", x + 0j, B_bar)
        h = torch.zeros_like(Bu[:, 0, :])
        hs = []
        for t in range(L):
            h = Lam_bar[None, :] * h + Bu[:, t, :]
            hs.append(h)
        hseq = torch.stack(hs, 1)
        y = 2.0 * torch.einsum("blp,dp->bld", hseq, Cmat).real + x * Dskip[None, None, :]
        return y

    def _B_ref(x, w_gate, w_up, w_down):
        g = torch.einsum("bsd,df->bsf", x, w_gate)
        u = torch.einsum("bsd,df->bsf", x, w_up)
        h = _gelu(g) * u
        return torch.einsum("bsf,fd->bsd", h, w_down)

    x = A_x
    xn = _layernorm(x, axis=-1)
    s = _A_ref(xn, A_Lambda_re, A_Lambda_im, A_B_re, A_B_im, A_C_re, A_C_im, A_log_dt, A_Dskip)
    g = _silu(_B_ref(xn, B_w_gate, B_w_up, B_w_down))
    return x + s * g
```

```python
import re, struct

def f2u(x):
    return struct.unpack("<I", struct.pack("<f", x))[0]
def fhex(x):
    return "0x%08x" % f2u(x)

class Asm:
    def __init__(self):
        self.lines = []
        self.vmq = []
        self.lgq = []
        self.nid = 0
        self.nlabel = 0
    def __call__(self, s):
        for l in s.strip("\n").split("\n"):
            l = l.strip()
            if not l: continue
            if l.endswith(":") or l.startswith(";") or l.startswith("."):
                self.lines.append(l)
            else:
                self.lines.append("    " + l)
    def c(self, s): self.lines.append("    ; " + s)
    def label(self, base="L"):
        self.nlabel += 1
        return f"{base}_{self.nlabel}"
    def vm(self, s):
        self(s); self.nid += 1; self.vmq.append(self.nid); return self.nid
    def ds(self, s):
        self(s); self.nid += 1; self.lgq.append(self.nid); return self.nid
    def _n(self, q, i):
        if i is None or i not in q: return None
        return len(q) - 1 - q.index(i)
    def wait(self, vm=None, lg=None):
        nv = nl = None
        if vm is not None:
            c = [self._n(self.vmq, i) for i in (vm if isinstance(vm, (list, tuple)) else [vm])]
            c = [x for x in c if x is not None]
            if c: nv = min(min(c), 63)
        if lg is not None:
            c = [self._n(self.lgq, i) for i in (lg if isinstance(lg, (list, tuple)) else [lg])]
            c = [x for x in c if x is not None]
            if c: nl = min(min(c), 14)
        parts = []
        if nv is not None:
            parts.append(f"vmcnt({nv})"); self.vmq = self.vmq[len(self.vmq) - nv:] if nv else []
        if nl is not None:
            parts.append(f"lgkmcnt({nl})"); self.lgq = self.lgq[len(self.lgq) - nl:] if nl else []
        if parts: self("s_waitcnt " + " ".join(parts))
    def wait_vm0(self):
        self("s_waitcnt vmcnt(0)"); self.vmq = []
    def wait_lg0(self):
        self("s_waitcnt lgkmcnt(0)"); self.lgq = []
    def text(self):
        return "\n".join(self.lines) + "\n"

REG = re.compile(r"^(-|\|)?(abs\()?([vas])(\d+|\[(\d+):(\d+)\])\)?\|?$")
def regs_of(tok):
    tok = tok.strip()
    if tok in ("vcc", "exec"): return {(tok, 0)}
    if tok in ("vcc_lo", "vcc_hi"): return {("vcc", 0)}
    if tok == "m0": return {("m0", 0)}
    m = REG.match(tok)
    if not m: return set()
    k = m.group(3)
    if m.group(5) is not None:
        return {(k, i) for i in range(int(m.group(5)), int(m.group(6)) + 1)}
    return {(k, int(m.group(4)))}
TRANS = ("v_exp_f32", "v_log_f32", "v_rcp_f32", "v_rsq_f32", "v_sqrt_f32", "v_sin_f32", "v_cos_f32")
def parse(line):
    l = line.split(";")[0].strip()
    if not l or l.endswith(":") or l.startswith("."): return None
    p = l.split(None, 1)
    op = p[0]
    rest = p[1] if len(p) > 1 else ""
    ops = [t.strip() for t in rest.split(",")]
    if ops:
        last = ops[-1].split()
        mods = last[1:]
        ops[-1] = last[0] if last else ""
    else: mods = []
    d = dict(op=op, ops=ops, mods=mods, line=l)
    base = re.sub(r"_(e32|e64|dpp|sdwa)$", "", op)
    d["base"] = base
    W, R = set(), set()
    isv = op.startswith("v_")
    d["valu"] = isv and not op.startswith("v_mfma")
    d["mfma"] = op.startswith("v_mfma")
    d["trans"] = base in TRANS
    d["dpp"] = op.endswith("_dpp") or any(m.startswith(("row_", "quad_perm", "wave_")) for m in mods)
    d["perml"] = op.startswith("v_permlane")
    d["vmem"] = op.startswith(("buffer_", "global_"))
    d["ds"] = op.startswith("ds_")
    d["store"] = False
    if isv:
        W |= regs_of(ops[0])
        srcs = ops[1:]
        if base in ("v_add_co_u32", "v_sub_co_u32", "v_addc_co_u32", "v_subb_co_u32", "v_div_scale_f32", "v_mad_u64_u32"):
            W |= regs_of(ops[1]); srcs = ops[2:]
        for t in srcs: R |= regs_of(t)
        if base.startswith(("v_fmac", "v_dot2c", "v_pk_fmac")) or d["dpp"] or base.startswith("v_writelane"): R |= regs_of(ops[0])
        if d["perml"]: R |= regs_of(ops[0]); W |= regs_of(ops[1])
        if base == "v_cndmask_b32" and len(ops) == 3: R |= {("vcc", 0)}
        if op.startswith("v_cmpx"): W |= {("exec", 0)}
        if d["mfma"]:
            d["A"] = regs_of(ops[1]); d["B"] = regs_of(ops[2]); d["C"] = regs_of(ops[3]); d["D"] = regs_of(ops[0])
            d["passes"] = 8 if "32x32" in op else 4
    elif d["vmem"]:
        lds = "lds" in mods
        if "load" in op and not lds:
            W |= regs_of(ops[0]);
            for t in ops[1:]: R |= regs_of(t)
        elif lds:
            for t in ops: R |= regs_of(t)
            R |= {("m0", 0)}
        else:
            for t in ops: R |= regs_of(t)
            d["store"] = True
            if op.startswith("buffer_"): d["sdata"] = regs_of(ops[0])
            else: d["sdata"] = regs_of(ops[1])
            d["wide"] = len(d["sdata"]) >= 3
            if "atomic" in op and "sc0" in mods: W |= d["sdata"]
    elif d["ds"]:
        if "read" in op or "permute" in op or "swizzle" in op:
            W |= regs_of(ops[0])
            for t in ops[1:]: R |= regs_of(t)
        else:
            for t in ops: R |= regs_of(t)
    elif op.startswith("s_"):
        if op.startswith(("s_cmp", "s_cbranch", "s_branch", "s_waitcnt", "s_nop", "s_barrier", "s_endpgm", "s_setprio", "s_sleep", "s_bitcmp")):
            for t in ops: R |= regs_of(t)
        else:
            W |= regs_of(ops[0])
            for t in ops[1:]: R |= regs_of(t)
            if "saveexec" in op: W |= {("exec", 0)}
    d["W"], d["R"] = W, R
    d["states"] = (int(ops[0], 0) + 1) if op == "s_nop" else 1
    return d

def lint(text):
    ins = [parse(l) for l in text.split("\n")]
    ins = [i for i in ins if i]
    out = []
    for j, c in enumerate(ins):
        dist = 0
        for i in range(j - 1, max(-1, j - 24), -1):
            p = ins[i]
            if p["op"] in ("s_endpgm", "s_branch"): break
            def need(n, why):
                if dist < n: out.append(f"{why}: need {n} have {dist}\n    P: {p['line']}\n    C: {c['line']}")
            pw = p["W"]
            vw = {r for r in pw if r[0] in "va" and r[0] != "vcc" and len(r[0]) == 1}
            sw = {r for r in pw if r[0] in ("s", "vcc")}
            if p["valu"]:
                if p["trans"] and (c["valu"] or c["mfma"]) and not c["trans"] and vw & c["R"]: need(1, "trans->use")
                if c["mfma"] and vw & c["R"]: need(2, "valu->mfma")
                if c["base"] in ("v_readfirstlane_b32", "v_readlane_b32") and vw & c["R"]: need(1, "valu->readlane")
                if (c["dpp"] or c["perml"]) and vw & c["R"]: need(2, "valu->dpp/permlane")
                if c["vmem"] and sw & c["R"]: need(5, "valu sgpr->vmem")
                if c["valu"] and sw & c["R"]: need(2, "valu sgpr->valu const")
                if ("exec", 0) in pw and c["dpp"]: need(5, "valu exec->dpp")
                if ("exec", 0) in pw and c["mfma"]: need(4, "valu exec->mfma")
            if p["mfma"]:
                n = {8: 12, 4: 8}[p["passes"]]
                D = p["D"]
                if c["mfma"]:
                    if D & (c["A"] | c["B"]): need(n, "mfma D->mfma A/B")
                    if D & c["C"] and not (D == c["C"] and p["passes"] == c["passes"]): need({8: 10, 4: 6}[p["passes"]], "mfma D->mfma C overlap")
                elif (c["valu"] and D & (c["R"] | c["W"])) or ((c["vmem"] or c["ds"]) and D & (c["R"] | c["W"])): need(n, "mfma D->valu/mem")
                if c["valu"] and p["C"] & c["W"] and not (D & c["W"]): need({8: 7, 4: 3}[p["passes"]], "mfma C WAR")
            if p["store"] and p.get("wide") and (c["valu"]) and p["sdata"] & c["W"]: need(2, "store data WAR")
            if p["op"].startswith("s_") and ("m0", 0) in pw and ("m0", 0) in c["R"] and c["vmem"]: need(1, "m0->lds dma")
            dist += p["states"]
            if dist >= 20: break
    return out
```

```python
import sys, math
from asmlib import *
NAME = "recurrent_scan__ssm_conv_s5__glu_gated_geglu__prompt"
STAMPS = "--stamps" in sys.argv

WS_EPOCH = 0
WS_XN = 0x100000
WS_A2 = 0x400000
WS_EB = 0xE00000
WS_YB = 0x1000000
WS_FY = 0x1400000
WS_STAMP = 0xF000000
LOG2E = 1.4426950408889634

def kstart(a, name):
    a(f".globl {name}\n.p2align 8\n.type {name},@function\n{name}:")
def kdesc(name, vgpr, sgpr, accum):
    return f""".amdhsa_kernel {name}
  .amdhsa_next_free_vgpr {vgpr}
  .amdhsa_next_free_sgpr {sgpr}
  .amdhsa_accum_offset {accum}
  .amdhsa_group_segment_fixed_size 0
  .amdhsa_kernarg_size 128
  .amdhsa_user_sgpr_count 2
  .amdhsa_user_sgpr_kernarg_segment_ptr 1
  .amdhsa_system_sgpr_workgroup_id_x 1
  .amdhsa_float_denorm_mode_32 3
.end_amdhsa_kernel
"""
def srd(a, d, lo, hi, size):
    a(f"s_mov_b32 s{d}, {lo}\ns_mov_b32 s{d+1}, {hi}\ns_mov_b32 s{d+2}, {size}\ns_mov_b32 s{d+3}, 0x00020000")
def stamp(a, i, base=80):
    if STAMPS: a(f"s_memrealtime s[{base+2*i}:{base+2*i+1}]")
def stamp_out(a, kidx, n, wsrd, base=80):
    if not STAMPS: return
    L = a.label(f"L_st{kidx}")
    a(f"""s_waitcnt lgkmcnt(0)
    v_cmp_eq_u32 vcc, 0, v0
    s_and_saveexec_b64 s[78:79], vcc
    s_cbranch_execz {L}
    s_lshl_b32 s77, s2, 6
    s_add_u32 s77, s77, {WS_STAMP + kidx * 0x10000}
    v_mov_b32 v10, 0""")
    for i in range(0, n, 2):
        for j in range(4):
            a(f"v_mov_b32 v{12+j}, s{base+2*i+j}")
        a(f"buffer_store_dwordx4 v[12:15], v10, s[{wsrd}:{wsrd+3}], s77 offen offset:{8*i}\ns_nop 2")
    a(f"s_waitcnt vmcnt(0)\n{L}:")

def wave_sum(a, regs, tmp):
    for sh in (8, 4, 2, 1):
        a("s_nop 1")
        for r in regs:
            a(f"v_add_f32_dpp v{r}, v{r}, v{r} row_ror:{sh} row_mask:0xf bank_mask:0xf")
    for op in ("v_permlane16_swap_b32", "v_permlane32_swap_b32"):
        for r, t in zip(regs, tmp): a(f"v_mov_b32 v{t}, v{r}")
        a("s_nop 1")
        for r, t in zip(regs, tmp): a(f"{op} v{t}, v{r}")
        a("s_nop 1")
        for r, t in zip(regs, tmp): a(f"v_add_f32 v{r}, v{r}, v{t}")

def gen_k0():
    a = Asm()
    kstart(a, "k0_kernel")
    a("""s_cmp_ge_u32 s2, 256
    s_cbranch_scc1 K0_end
    s_load_dwordx2 s[4:5], s[0:1], 0
    s_load_dwordx2 s[6:7], s[0:1], 120
    v_and_b32 v1, 63, v0
    v_lshrrev_b32 v2, 6, v0
    v_lshlrev_b32 v1, 4, v1
    v_lshl_add_u32 v1, v2, 11, v1
    s_lshl_b32 s3, s2, 13
    s_waitcnt lgkmcnt(0)""")
    srd(a, 8, "s4", "s5", 2097152)
    srd(a, 12, "s6", "s7", 0x10000000)
    a("""buffer_load_dwordx4 v[4:7], v1, s[8:11], s3 offen
    buffer_load_dwordx4 v[8:11], v1, s[8:11], s3 offen offset:1024""")
    a(f"""s_cmp_lg_u32 s2, 0
    s_cbranch_scc1 K0_noepoch
    s_load_dword s16, s[6:7], {WS_EPOCH}
    s_waitcnt lgkmcnt(0)
    s_mul_i32 s16, s16, 1664525
    s_add_u32 s16, s16, 1013904223
    v_cmp_eq_u32 vcc, 0, v0
    s_and_saveexec_b64 s[18:19], vcc
    s_cbranch_execz K0_noep2
    v_mov_b32 v12, s16
    v_mov_b32 v13, 0
    buffer_store_dword v12, v13, s[12:15], 0 offen offset:{WS_EPOCH}
K0_noep2:
    s_mov_b64 exec, s[18:19]
K0_noepoch:
    s_waitcnt vmcnt(0)""")
    for r, (src, dst) in enumerate(((4, 16), (8, 24))):
        for j in range(4):
            a(f"v_lshlrev_b32 v{dst+2*j}, 16, v{src+j}\nv_and_b32 v{dst+2*j+1}, 0xffff0000, v{src+j}")
    for r, dst in enumerate((16, 24)):
        s = 32 + r
        a(f"v_add_f32 v{s}, v{dst}, v{dst+1}")
        for j in range(2, 8): a(f"v_add_f32 v{s}, v{s}, v{dst+j}")
    wave_sum(a, [32, 33], [34, 35])
    a(f"v_mul_f32 v32, {fhex(1/512)}, v32\nv_mul_f32 v33, {fhex(1/512)}, v33")
    for r, dst in enumerate((16, 24)):
        s = 36 + r
        for j in range(8):
            a(f"v_sub_f32 v40, v{dst+j}, v{32+r}")
            a(f"v_mul_f32 v{s}, v40, v40" if j == 0 else f"v_fmac_f32 v{s}, v40, v40")
    wave_sum(a, [36, 37], [34, 35])
    a(f"""v_mul_f32 v36, {fhex(1/512)}, v36
    v_mul_f32 v37, {fhex(1/512)}, v37
    v_cvt_pk_bf16_f32 v38, v32, v33
    v_cvt_pk_bf16_f32 v39, v36, v37
    v_lshlrev_b32 v32, 16, v38
    v_and_b32 v33, 0xffff0000, v38
    v_lshlrev_b32 v36, 16, v39
    v_and_b32 v37, 0xffff0000, v39
    v_add_f32 v36, {fhex(1e-5)}, v36
    v_add_f32 v37, {fhex(1e-5)}, v37
    v_cvt_pk_bf16_f32 v39, v36, v37
    v_lshlrev_b32 v36, 16, v39
    v_and_b32 v37, 0xffff0000, v39
    v_sqrt_f32 v36, v36
    v_sqrt_f32 v37, v37
    s_nop 0
    v_cvt_pk_bf16_f32 v39, v36, v37
    v_lshlrev_b32 v36, 16, v39
    v_and_b32 v37, 0xffff0000, v39
    v_rcp_f32 v36, v36
    v_rcp_f32 v37, v37""")
    for r, dst in enumerate((16, 24)):
        for j in range(4):
            x0, x1 = dst + 2 * j, dst + 2 * j + 1
            a(f"""v_sub_f32 v{x0}, v{x0}, v{32+r}
            v_sub_f32 v{x1}, v{x1}, v{32+r}
            v_cvt_pk_bf16_f32 v40, v{x0}, v{x1}
            v_lshlrev_b32 v{x0}, 16, v40
            v_and_b32 v{x1}, 0xffff0000, v40
            v_mul_f32 v{x0}, v{x0}, v{36+r}
            v_mul_f32 v{x1}, v{x1}, v{36+r}
            v_cvt_pk_bf16_f32 v{44+4*r+j}, v{x0}, v{x1}""")
    a(f"""s_add_u32 s3, s3, {WS_XN}
    buffer_store_dwordx4 v[44:47], v1, s[12:15], s3 offen
    buffer_store_dwordx4 v[48:51], v1, s[12:15], s3 offen offset:1024
K0_end:
    s_endpgm""")
    return a.text()

def cmul_acc(a, dr, di, lr, li, hr, hi, br, bi, t=None):
    if t is None:
        a(f"""v_fma_f32 v{dr}, v{lr}, v{hr}, v{br}
        v_fma_f32 v{di}, v{lr}, v{hi}, v{bi}
        v_fma_f32 v{dr}, -v{li}, v{hi}, v{dr}
        v_fma_f32 v{di}, v{li}, v{hr}, v{di}""")
    else:
        a(f"""v_fma_f32 v{t[0]}, v{lr}, v{hr}, v{br}
        v_fma_f32 v{t[1]}, v{lr}, v{hi}, v{bi}
        v_fma_f32 v{t[0]}, -v{li}, v{hi}, v{t[0]}
        v_fma_f32 v{di}, v{li}, v{hr}, v{t[1]}
        v_mov_b32 v{dr}, v{t[0]}""")
def csq(a, dr, di, sr, si, t):
    a(f"""v_mul_f32 v{t}, v{si}, v{si}
    v_add_f32 v{di}, v{si}, v{si}
    v_mul_f32 v{di}, v{di}, v{sr}
    v_fma_f32 v{dr}, v{sr}, v{sr}, -v{t}""")

STG = 49152
ACC = 128
def gen_k1():
    a = Asm()
    kstart(a, "k1_kernel")
    a("s_cmp_ge_u32 s2, 256\ns_cbranch_scc0 K1_go\ns_endpgm\nK1_go:")
    stamp(a, 0)
    a("""s_load_dwordx4 s[4:7], s[0:1], 8
    s_load_dwordx4 s[40:43], s[0:1], 24
    s_load_dwordx2 s[44:45], s[0:1], 56
    s_load_dwordx4 s[48:51], s[0:1], 80
    s_load_dwordx2 s[46:47], s[0:1], 120
    s_and_b32 s30, s2, 7
    s_lshr_b32 s31, s2, 3
    s_and_b32 s24, s30, 1
    s_lshl_b32 s24, s24, 3
    s_and_b32 s32, s31, 7
    s_add_u32 s24, s24, s32          ; mi
    s_lshr_b32 s25, s30, 1
    s_lshl_b32 s25, s25, 2
    s_lshr_b32 s32, s31, 3
    s_add_u32 s25, s25, s32          ; nj
    v_lshrrev_b32 v22, 6, v0
    v_and_b32 v0, 63, v0             ; lane
    v_readfirstlane_b32 s26, v22     ; w
    s_mul_i32 s28, s25, 3
    s_lshl_b32 s29, s25, 1
    s_add_u32 s29, s29, 10
    s_cmp_ge_u32 s25, 11
    s_cselect_b32 s28, s29, s28      ; fbstart
    s_cselect_b32 s29, 1, 0
    s_waitcnt lgkmcnt(0)""")
    a(f"s_load_dword s27, s[46:47], {WS_EPOCH}")
    a(f"s_add_u32 s8, s46, {WS_XN}\ns_addc_u32 s9, s47, 0\ns_mov_b32 s10, 2097152\ns_mov_b32 s11, 0x00020000")
    a("""s_cmp_ge_u32 s26, 2
    s_cselect_b32 s12, s42, s40
    s_cselect_b32 s13, s43, s41
    s_mov_b32 s14, 524288
    s_mov_b32 s15, 0x00020000
    s_cselect_b32 s16, s50, s48
    s_cselect_b32 s17, s51, s49
    s_mov_b32 s18, 1409024
    s_mov_b32 s19, 0x00020000""")
    srd(a, 20, "s46", "s47", 0x10000000)
    a("""v_lshrrev_b32 v22, 3, v0          ; a = l>>3
    v_and_b32 v23, 7, v0
    v_lshrrev_b32 v24, 4, v0
    v_xor_b32 v23, v23, v24           ; (l&7)^(l>>4)
    v_lshlrev_b32 v23, 4, v23         ; 16*c (q even)
    v_xor_b32 v24, 64, v23            ; 16*c (q odd)
    v_lshrrev_b32 v25, 2, v22
    v_lshlrev_b32 v25, 4, v25
    v_and_b32 v26, 3, v22
    v_add_u32 v25, v25, v26
    v_lshlrev_b32 v25, 10, v25        ; (16(a>>2)+(a&3))*1024
    v_add_u32 v1, v25, v23
    v_add_u32 v2, v25, v24
    v_add_u32 v3, 6144, v1
    v_add_u32 v4, 9216, v2
    v_add_u32 v2, 3072, v2
    v_lshlrev_b32 v25, 10, v22
    v_add_u32 v5, v25, v23
    v_add_u32 v6, v25, v24
    v_add_u32 v6, 7168, v6
    v_lshrrev_b32 v22, 4, v0          ; l>>4
    v_bfe_u32 v23, v0, 2, 2           ; kk
    v_and_b32 v24, 3, v0
    v_lshlrev_b32 v24, 4, v24         ; (l&3)*16
    s_movk_i32 s33, 2752""")
    for j in range(6):
        a(f"""v_add_u32 v25, {4*j}, v22
        v_mul_u32_u24 v26, 11, v25
        v_lshrrev_b32 v26, 5, v26         ; kq_l = g/3
        v_mul_u32_u24 v27, 3, v26
        v_sub_u32 v27, v25, v27           ; fb = g%3
        v_lshl_add_u32 v26, v26, 2, v23
        v_mul_u32_u24 v26, s33, v26
        v_lshl_add_u32 v26, v27, 6, v26
        v_add_u32 v26, v26, v24
        v_subrev_u32 v{7+j}, {1024*(j&3)}, v26""")
    a("""s_lshl_b32 s34, s24, 7
    s_lshl_b32 s35, s26, 5
    s_add_u32 s34, s34, s35
    s_lshl_b32 s34, s34, 10
    s_and_b32 s36, s26, 1
    s_lshl_b32 s35, s25, 1
    s_add_u32 s35, s35, s36
    s_lshl_b32 s35, s35, 14
    s_mul_i32 s36, s36, 88064        ; 32*2752*(w&1)
    s_lshl_b32 s37, s28, 6
    s_add_u32 s36, s36, s37          ; F base
    s_lshl_b32 s37, s26, 12          ; lds X  4096w
    s_lshl_b32 s38, s26, 11
    s_add_u32 s38, s38, 16384        ; lds B
    s_mul_i32 s39, s26, 6144
    s_add_u32 s39, s39, 24576        ; lds F""")
    def dma_ops(c):
        slot = (c % 3) * STG
        ops = []
        def x(q):
            def f():
                if q == 0: a(f"s_add_u32 s52, s34, {c*128}\ns_add_u32 m0, s37, {slot}\ns_nop 0")
                return a.vm(f"buffer_load_dwordx4 v{1+q}, s[8:11], s52 offen offset:{1024*q} lds")
            return f
        def b(q):
            def f():
                if q == 0: a(f"s_add_u32 s53, s35, {c*128}\ns_add_u32 m0, s38, {slot}\ns_nop 0")
                return a.vm(f"buffer_load_dwordx4 v{5+q}, s[12:15], s53 offen offset:{1024*q} lds")
            return f
        def ff(j):
            def f():
                if j == 0: a(f"s_add_u32 s54, s36, {c*64*2752}\ns_add_u32 m0, s39, {slot}\ns_nop 0")
                if j == 4: a(f"s_add_u32 m0, s39, {slot+4096}\ns_nop 0")
                return a.vm(f"buffer_load_dwordx4 v{7+j}, s[16:19], s54 offen offset:{1024*(j&3)} lds")
            return f
        return [x(q) for q in range(4)] + [b(q) for q in range(2)] + [ff(j) for j in range(6)]
    dma_ids = {}
    for c in range(3):
        dma_ids[c] = [f() for f in dma_ops(c)]
    a("""v_and_b32 v22, 31, v0
    s_lshl_b32 s33, s25, 6
    v_lshl_add_u32 v23, v22, 1, s33""")
    srd(a, 56, "s4", "s5", 1024); srd(a, 60, "s6", "s7", 1024); srd(a, 64, "s44", "s45", 1024)
    p1 = a.vm("buffer_load_ushort v40, v23, s[56:59], 0 offen")
    p2 = a.vm("buffer_load_ushort v41, v23, s[60:63], 0 offen")
    p3 = a.vm("buffer_load_ushort v42, v23, s[64:67], 0 offen")
    a("""v_lshrrev_b32 v23, 5, v0          ; h
    v_bfe_u32 v24, v0, 1, 3           ; (i>>1)&7
    v_xor_b32 v24, v24, v23
    v_lshlrev_b32 v24, 4, v24
    v_lshl_add_u32 v24, v22, 7, v24   ; ba[0]
    v_mul_u32_u24 v25, 1536, v23
    v_bfe_u32 v26, v0, 2, 2
    v_lshl_add_u32 v25, v26, 6, v25
    v_bfe_u32 v26, v0, 4, 1
    v_lshl_add_u32 v25, v26, 5, v25
    v_and_b32 v26, 3, v0
    v_lshl_add_u32 v25, v26, 3, v25   ; fa""")
    XA = lambda k, s: 64 + 12 * k + s
    BA = lambda k, s: 64 + 12 * k + 4 + s
    FA = lambda k: 64 + 12 * k + 8
    for k in range(3):
        for s in range(4):
            a(f"v_xor_b32 v26, {32*s}, v24\nv_add_u32 v{BA(k,s)}, {k*STG}, v26\nv_add_u32 v{XA(k,s)}, s37, v{BA(k,s)}")
        a(f"v_add_u32 v{FA(k)}, {k*STG}, v25")
    a.wait(vm=p3)
    a(f"""v_lshlrev_b32 v40, 16, v40        ; Lre
    v_lshlrev_b32 v41, 16, v41        ; Lim
    v_lshlrev_b32 v42, 16, v42        ; log_dt
    v_mul_f32 v42, {fhex(LOG2E)}, v42
    v_exp_f32 v42, v42
    s_nop 0
    v_cvt_pk_bf16_f32 v42, v42, v42
    v_lshlrev_b32 v42, 16, v42        ; dt
    v_mul_f32 v26, v42, v40           ; a
    v_mul_f32 v27, v42, v41           ; b
    v_mul_f32 v26, {fhex(LOG2E)}, v26
    v_mul_f32 v27, {fhex(1/(2*math.pi))}, v27
    v_exp_f32 v26, v26                ; e^a
    v_rndne_f32 v28, v27
    v_sub_f32 v27, v27, v28
    v_mul_f32 v28, 0.5, v27
    v_sin_f32 v27, v27                ; sin b
    v_sin_f32 v28, v28                ; sin b/2
    s_nop 0
    v_mul_f32 v28, v28, v28
    v_mul_f32 v28, -2.0, v28          ; cos b - 1
    v_add_f32 v29, 1.0, v28           ; cos b
    v_mul_f32 v44, v26, v29
    v_mul_f32 v45, v26, v27
    v_add_f32 v26, -1.0, v26
    v_fma_f32 v26, v26, v29, v28
    v_mul_f32 v28, v40, v40
    v_fmac_f32 v28, v41, v41
    v_rcp_f32 v28, v28
    v_mul_f32 v50, v26, v40
    v_fmac_f32 v50, v45, v41
    v_mul_f32 v51, v45, v40
    v_fma_f32 v51, -v26, v41, v51
    v_add_f32 v28, v28, v28
    v_mul_f32 v50, v50, v28
    v_mul_f32 v51, v51, v28""")
    csq(a, 46, 47, 44, 45, 26); csq(a, 48, 49, 46, 47, 26); csq(a, 46, 47, 48, 49, 26); csq(a, 28, 29, 46, 47, 26)
    a("v_mov_b32 v46, v28\nv_mov_b32 v47, v29")
    csq(a, 48, 49, 46, 47, 26); csq(a, 28, 29, 48, 49, 26); csq(a, 48, 49, 28, 29, 26)
    a("s_waitcnt lgkmcnt(0)\ns_or_b32 s27, s27, 1")
    def reads(c, s):
        k = c % 3; b = 36 * ((4 * c + s) & 1)
        r = [f"ds_read_b128 a[{b}:{b+3}], v{XA(k,s)}", f"ds_read_b128 a[{b+4}:{b+7}], v{BA(k,s)} offset:16384",
             f"ds_read_b128 a[{b+8}:{b+11}], v{BA(k,s)} offset:20480"]
        for fb in range(3):
            for m in range(2):
                for e in range(2):
                    d = b + 12 + 4 * (2 * fb + m) + 2 * e
                    r.append(f"ds_read_b64_tr_b16 a[{d}:{d+1}], v{FA(k)} offset:{24576 + m*12288 + (4*s+e)*768 + fb*256}")
        return r
    def mfma(c, s, j):
        b = 36 * ((4 * c + s) & 1)
        D = f"v[{ACC+16*j}:{ACC+16*j+15}]"
        C = "0" if (c == 0 and s == 0) else D
        X = f"a[{b}:{b+3}]"; W = f"a[{b+4+4*j}:{b+7+4*j}]"
        if j < 2: a(f"v_mfma_f32_32x32x16_bf16 {D}, {X}, {W}, {C}")
        else: a(f"v_mfma_f32_32x32x16_bf16 {D}, {W}, {X}, {C}")
    stamp(a, 1)
    a.wait(vm=dma_ids[0]); a("s_barrier")
    for r in reads(0, 0): a.ds(r)
    pend = []
    for c in range(8):
        for s in range(4):
            a.wait_lg0()
            nxt = None
            if s < 3: nxt = reads(c, s + 1)
            elif c < 7: nxt = reads(c + 1, 0)
            nxt = nxt or []
            first = 0
            if s == 3 and c < 7:
                mfma(c, s, 0); first = 1
                a.wait(vm=dma_ids[c + 1]); a("s_barrier")
                if c + 3 < 8:
                    pend = dma_ops(c + 3); dma_ids[c + 3] = []; pc = c + 3
            nslots = 6 - first
            per = -(-len(nxt) // nslots)
            for j in range(first, 8):
                mfma(c, s, j)
                for _ in range(per):
                    if nxt: a.ds(nxt.pop(0))
                if j >= 5 and pend:
                    dma_ids[pc].append(pend.pop(0)())
            assert not nxt
        if c == 0: stamp(a, 2)
    assert not pend
    stamp(a, 3)
    RE, IM = ACC, ACC + 16
    a("s_nop 7")
    a(f"v_mov_b32 v52, v{RE}\nv_mov_b32 v53, v{IM}")
    for r in range(1, 16):
        s_, d_ = (52, 54) if r & 1 else (54, 52)
        cmul_acc(a, d_, d_ + 1, 44, 45, s_, s_ + 1, RE + r, IM + r)
    a("""v_and_b32 v22, 31, v0
    v_lshrrev_b32 v23, 5, v0
    v_lshlrev_b32 v24, 3, v22          ; p*8
    v_lshl_add_u32 v25, v23, 8, v24
    s_lshl_b32 s33, s26, 9
    v_add_u32 v25, s33, v25""")
    a.ds("ds_write_b64 v25, v[54:55]")
    a.wait_lg0(); a("s_barrier")
    EL = 100
    for j in range(8): a.ds(f"ds_read_b64 v[{EL+2*j}:{EL+2*j+1}], v24 offset:{256*j}")
    a.wait_lg0()
    a("s_cmp_lg_u32 s26, 0\ns_cbranch_scc1 K1_nopub")
    a(f"v_mov_b32 v52, v{EL}\nv_mov_b32 v53, v{EL+1}")
    for j in range(1, 8):
        s_, d_ = (52, 56) if j & 1 else (56, 52)
        cmul_acc(a, d_, d_ + 1, 46, 47, s_, s_ + 1, EL + 2 * j, EL + 2 * j + 1)
    a(f"""v_mov_b32 v58, s27
    v_mov_b32 v59, s27
    s_lshl_b32 s33, s25, 4
    s_add_u32 s33, s33, s24
    s_lshl_b32 s33, s33, 9
    s_add_u32 s33, s33, {WS_EB}
    v_lshlrev_b32 v26, 4, v22
    s_mov_b64 exec, 0xffffffff
    buffer_store_dwordx4 v[56:59], v26, s[20:23], s33 offen sc1
    s_mov_b64 exec, -1
K1_nopub:""")
    stamp(a, 4)
    K0c = -2 * math.sqrt(2 / math.pi) * LOG2E
    a(f"""v_mov_b32 v60, {fhex(K0c)}
    v_mov_b32 v61, {fhex(K0c)}
    v_mov_b32 v62, {fhex(K0c*0.044715)}
    v_mov_b32 v63, {fhex(K0c*0.044715)}
    v_mov_b32 v30, 1.0
    v_mov_b32 v31, 1.0
    v_lshlrev_b32 v27, 4, v0
    s_lshl_b32 s33, s24, 2
    s_add_u32 s33, s33, s26
    s_mul_i32 s55, s33, {150*1024}
    s_add_u32 s55, s55, {WS_A2}
    s_lshl_b32 s33, s28, 11
    s_add_u32 s33, s33, s55""")
    for fb in range(3):
        G, U = ACC + 32 + 32 * fb, ACC + 48 + 32 * fb
        if fb == 0: a("s_cmp_lg_u32 s29, 0\ns_cbranch_scc1 K1_skip0")
        for e in range(2):
            T = [32 + 2 * i for i in range(4)]
            g = [G + 8 * e + 2 * i for i in range(4)]; u = [U + 8 * e + 2 * i for i in range(4)]
            P = lambda r: f"v[{r}:{r+1}]"
            for i in range(4): a(f"v_pk_mul_f32 {P(T[i])}, {P(g[i])}, {P(g[i])}")
            for i in range(4): a(f"v_pk_fma_f32 {P(T[i])}, {P(T[i])}, v[62:63], v[60:61]")
            for i in range(4): a(f"v_pk_mul_f32 {P(T[i])}, {P(T[i])}, {P(g[i])}")
            for i in range(4): a(f"v_exp_f32 v{T[i]}, v{T[i]}\nv_exp_f32 v{T[i]+1}, v{T[i]+1}\nv_pk_mul_f32 {P(u[i])}, {P(u[i])}, {P(g[i])}")
            for i in range(4): a(f"v_pk_add_f32 {P(T[i])}, {P(T[i])}, v[30:31]")
            for i in range(4): a(f"v_rcp_f32 v{T[i]}, v{T[i]}\nv_rcp_f32 v{T[i]+1}, v{T[i]+1}")
            for i in range(4): a(f"v_pk_mul_f32 {P(u[i])}, {P(u[i])}, {P(T[i])}")
            for i in range(4): a(f"v_cvt_pk_bf16_f32 v{G+8*e+i}, v{u[i]}, v{u[i]+1}")
            off = 2048 * fb + 1024 * e
            if off == 4096: a("s_add_u32 s33, s33, 4096")
            a(f"buffer_store_dwordx4 v[{G+8*e}:{G+8*e+3}], v27, s[20:23], s33 offen offset:{off & 4095}")
        if fb == 0: a("K1_skip0:")
    stamp(a, 5)
    TB = 160
    a(f"""s_lshl_b32 s33, s25, 13
    s_add_u32 s33, s33, {WS_EB}
    s_add_u32 s68, s46, s33
    s_addc_u32 s69, s47, 0
    s_mov_b32 s70, 8192
    s_mov_b32 s71, 0x00020000
    s_lshl_b32 s33, s24, 9
    v_lshlrev_b32 v26, 4, v22
    v_add_u32 v26, s33, v26
K1_poll:""")
    for j in range(15):
        a(f"v_subrev_u32 v28, {512*(j+1)}, v26\nbuffer_load_dwordx4 v[{TB+4*j}:{TB+4*j+3}], v28, s[68:71], 0 offen sc1")
    a("v_mov_b32 v29, 0\ns_waitcnt vmcnt(0)")
    for j in range(15):
        a(f"v_cmp_eq_u32 vcc, s27, v{TB+4*j+2}\ns_nop 1\nv_addc_co_u32 v29, vcc, 0, v29, vcc")
    a("v_cmp_ne_u32 vcc, s24, v29\ns_cbranch_vccnz K1_poll")
    a.vmq = []
    a(f"v_mov_b32 v52, v{TB+56}\nv_mov_b32 v53, v{TB+57}")
    for n, j in enumerate(range(13, -1, -1)):
        s_, d_ = (52, 54) if n % 2 == 0 else (54, 52)
        cmul_acc(a, d_, d_ + 1, 48, 49, s_, s_ + 1, TB + 4 * j, TB + 4 * j + 1)
    a("""s_lshl_b32 s33, s26, 1
    v_add_u32 v23, s33, v23            ; sub
    v_mov_b32 v56, v52
    v_mov_b32 v57, v53""")
    for j in range(7):
        s_, d_ = (52, 54) if j % 2 == 0 else (54, 52)
        a(f"v_cmp_eq_u32 vcc, {j+1}, v23")
        cmul_acc(a, d_, d_ + 1, 46, 47, s_, s_ + 1, EL + 2 * j, EL + 2 * j + 1)
        a(f"v_cndmask_b32 v56, v56, v{d_}, vcc\nv_cndmask_b32 v57, v57, v{d_+1}, vcc")
    for r in range(16):
        hr, hi = (56, 57) if r == 0 else (RE + r - 1, IM + r - 1)
        a(f"""v_fma_f32 v{RE+r}, v44, v{hr}, v{RE+r}
        v_fma_f32 v{IM+r}, v44, v{hi}, v{IM+r}
        v_fma_f32 v{RE+r}, -v45, v{hi}, v{RE+r}
        v_fma_f32 v{IM+r}, v45, v{hr}, v{IM+r}""")
        if r > 0:
            q = r - 1
            a(f"""v_mul_f32 v{160+q}, v50, v{RE+q}
            v_mul_f32 v{176+q}, v50, v{IM+q}
            v_fma_f32 v{160+q}, -v51, v{IM+q}, v{160+q}
            v_fma_f32 v{176+q}, -v51, v{RE+q}, -v{176+q}""")
    q = 15
    a(f"""v_mul_f32 v{160+q}, v50, v{RE+q}
    v_mul_f32 v{176+q}, v50, v{IM+q}
    v_fma_f32 v{160+q}, -v51, v{IM+q}, v{160+q}
    v_fma_f32 v{176+q}, -v51, v{RE+q}, -v{176+q}""")
    for m in range(2):
        for i in range(8):
            a(f"v_cvt_pk_bf16_f32 v{192+8*m+i}, v{160+16*m+2*i}, v{160+16*m+2*i+1}")
    a("""v_lshrrev_b32 v23, 5, v0
    v_lshlrev_b32 v24, 6, v22
    v_lshl_add_u32 v24, v23, 5, v24
    s_add_u32 s33, s37, 4096
    v_add_u32 v24, s33, v24""")
    for m in range(2):
        for i in range(2):
            a.ds(f"ds_write_b128 v24, v[{192+8*m+4*i}:{195+8*m+4*i}] offset:{2048*m+16*i}")
    a("""v_bfe_u32 v25, v0, 2, 2
    v_lshl_add_u32 v25, v23, 3, v25
    v_lshlrev_b32 v25, 6, v25
    v_and_b32 v26, 1, v0
    v_lshl_add_u32 v25, v26, 5, v25
    v_bfe_u32 v26, v0, 4, 1
    v_lshl_add_u32 v25, v26, 4, v25
    v_bfe_u32 v26, v0, 1, 1
    v_lshl_add_u32 v25, v26, 3, v25
    v_add_u32 v25, s33, v25""")
    a.wait_lg0()
    for m in range(2):
        for s in range(2):
            for e in range(2):
                d = 208 + 4 * (2 * m + s) + 2 * e
                a.ds(f"ds_read_b64_tr_b16 v[{d}:{d+1}], v25 offset:{2048*m + 1024*s + 256*e}")
    a(f"s_lshl_b32 s33, s25, 12\ns_add_u32 s33, s33, {86*1024}\ns_add_u32 s33, s33, s55")
    a.wait_lg0()
    for y in range(4):
        a(f"buffer_store_dwordx4 v[{208+4*y}:{211+4*y}], v27, s[20:23], s33 offen offset:{1024*y}")
    stamp(a, 6)
    if STAMPS:
        a("s_waitcnt vmcnt(0)"); stamp(a, 7)
        a("v_mov_b32 v0, s26\nv_mbcnt_lo_u32_b32 v0, -1, v0\nv_mbcnt_hi_u32_b32 v0, -1, v0")
    stamp_out(a, 1, 8, 20)
    a("s_endpgm")
    return a.text()

def gen_k2():
    a = Asm()
    kstart(a, "k2_kernel")
    a("s_cmp_ge_u32 s2, 256\ns_cbranch_scc0 K2_go\ns_endpgm\nK2_go:")
    stamp(a, 0)
    a("""s_load_dwordx2 s[4:5], s[0:1], 0
    s_load_dwordx4 s[40:43], s[0:1], 40
    s_load_dwordx2 s[44:45], s[0:1], 64
    s_load_dwordx4 s[48:51], s[0:1], 96
    s_load_dwordx2 s[46:47], s[0:1], 120
    s_and_b32 s30, s2, 7
    s_lshr_b32 s31, s2, 3
    s_and_b32 s24, s30, 3
    s_lshl_b32 s24, s24, 2
    s_and_b32 s32, s31, 3
    s_add_u32 s24, s24, s32          ; rt
    s_lshr_b32 s25, s31, 2           ; ct
    s_lshr_b32 s28, s30, 2           ; 1 = D role
    v_lshrrev_b32 v22, 6, v0
    v_and_b32 v0, 63, v0
    v_readfirstlane_b32 s26, v22     ; w
    s_waitcnt lgkmcnt(0)""")
    a(f"s_load_dword s27, s[46:47], {WS_EPOCH}")
    srd(a, 20, "s46", "s47", 0x10000000)
    a(f"""s_lshl_b32 s33, s24, 2
    s_add_u32 s33, s33, s26
    s_mul_i32 s55, s33, {150*1024}
    s_add_u32 s55, s55, {WS_A2}
    s_lshl_b32 s37, s26, 12
    v_lshlrev_b32 v1, 4, v0          ; lane*16
    s_lshl_b32 s56, s24, 3
    s_add_u32 s56, s56, s25
    s_lshl_b32 s56, s56, 2
    s_add_u32 s56, s56, s26          ; (rt*8+ct)*4+w
    s_lshl_b32 s57, s56, 7
    s_add_u32 s57, s57, {WS_FY}
    s_lshl_b32 s56, s56, 13
    s_add_u32 s56, s56, {WS_YB}
    s_cmp_eq_u32 s28, 0
    s_cbranch_scc1 K2_Y""")
    NA = 24
    def role(isD):
        nks = 86 if isD else 64
        nst = 11 if isD else 8
        ks0 = 0 if isD else 86
        a.vmq = []; a.lgq = []
        if isD:
            srd(a, 12, "s48", "s49", 1409024)
            a("""v_bfe_u32 v22, v0, 2, 2
            v_lshrrev_b32 v23, 5, v0
            v_lshl_add_u32 v22, v23, 2, v22
            v_lshlrev_b32 v22, 10, v22
            v_bfe_u32 v23, v0, 4, 1
            v_lshl_add_u32 v22, v23, 6, v22
            v_and_b32 v23, 3, v0
            v_lshl_add_u32 v2, v23, 4, v22
            v_add_u32 v3, 7168, v2
            v_add_u32 v4, 14336, v2
            v_add_u32 v5, 21504, v2
            s_lshl_b32 s35, s25, 7""")
        else:
            a("""s_cmp_ge_u32 s26, 2
            s_cselect_b32 s12, s42, s40
            s_cselect_b32 s13, s43, s41
            s_mov_b32 s14, 524288
            s_mov_b32 s15, 0x00020000
            v_lshrrev_b32 v22, 3, v0
            v_and_b32 v23, 7, v0
            v_lshrrev_b32 v24, 4, v0
            v_xor_b32 v23, v23, v24
            v_lshlrev_b32 v23, 4, v23
            v_xor_b32 v24, 64, v23
            v_lshl_add_u32 v2, v22, 10, v23
            v_lshl_add_u32 v3, v22, 10, v24
            v_add_u32 v4, 14336, v2
            v_add_u32 v5, 21504, v3
            v_add_u32 v3, 7168, v3
            s_lshl_b32 s35, s25, 1
            s_and_b32 s33, s26, 1
            s_add_u32 s35, s35, s33
            s_lshl_b32 s35, s35, 15""")
        def bdma(st):
            ids = []
            slot = (st % 10) * 16384
            if isD:
                a(f"s_add_u32 s33, s26, {4*st}")
                if 4 * st + 3 > 42: a("s_min_u32 s33, s33, 42")
                a("s_lshl_b32 s33, s33, 15\ns_add_u32 s52, s33, s35")
            else:
                a(f"s_add_u32 s52, s35, {128*st}")
            a(f"s_add_u32 m0, s37, {slot}\ns_nop 0")
            for q in range(4):
                ids.append(a.vm(f"buffer_load_dwordx4 v{2+q}, s[12:15], s52 offen offset:{1024*q} lds"))
            return ids
        aid = {}
        def aload(k):
            if k % 4 == 0: a(f"s_add_u32 s53, s55, {(ks0+k)*1024}")
            r = 4 * (k % NA)
            aid[k] = a.vm(f"buffer_load_dwordx4 a[{r}:{r+3}], v1, s[20:23], s53 offen offset:{1024*(k%4)}")
        bid = {}
        for st in range(3):
            bid[st] = bdma(st)
            for k in range(8 * st, 8 * st + 8): aload(k)
        if isD:
            a("""v_lshrrev_b32 v22, 5, v0
            v_lshlrev_b32 v22, 9, v22
            v_bfe_u32 v23, v0, 2, 2
            v_lshl_add_u32 v22, v23, 6, v22
            v_bfe_u32 v23, v0, 4, 1
            v_lshl_add_u32 v22, v23, 5, v22
            v_and_b32 v23, 3, v0
            v_lshl_add_u32 v8, v23, 3, v22
            v_add_u32 v9, 0x10000, v8
            v_add_u32 v10, 0x20000, v8""")
            for r in range(64, 128): a(f"v_mov_b32 v{r}, 0")
            a("v_mov_b32 v6, 0\nv_mov_b32 v7, 0")
            srd(a, 8, "s4", "s5", 2097152)
            srd(a, 16, "s44", "s45", 1024)
            a(f"""v_and_b32 v22, 31, v0
            v_lshrrev_b32 v23, 5, v0
            v_lshlrev_b32 v24, 1, v22
            v_lshl_add_u32 v11, v23, 14, v24      ; h*16*1024 + n*2
            s_lshl_b32 s33, s24, 2
            s_add_u32 s33, s33, s26
            s_lshl_b32 s58, s33, 15
            s_lshl_b32 s59, s25, 7
            s_add_u32 s58, s58, s59
            s_add_u32 s60, s58, {WS_XN}""")
        else:
            a("""v_and_b32 v22, 31, v0
            v_lshrrev_b32 v23, 5, v0
            v_bfe_u32 v24, v0, 1, 3
            v_xor_b32 v24, v24, v23
            v_lshlrev_b32 v24, 4, v24
            v_lshl_add_u32 v24, v22, 7, v24""")
            for s in range(4):
                a(f"v_xor_b32 v{8+s}, {32*s}, v24\nv_add_u32 v{12+s}, 0x10000, v{8+s}")
        def breads(k):
            st, ks = divmod(k, 8)
            slot = (st % 10) * 16384
            b = 96 + 8 * (k & 1)
            r = []
            for nb in range(2):
                if isD:
                    for e2 in range(2):
                        off = slot + (ks >> 1) * 4096 + (ks & 1) * 2048 + e2 * 1024 + nb * 256
                        d = b + 4 * nb + 2 * e2
                        r.append(f"ds_read_b64_tr_b16 a[{d}:{d+1}], v{8 + (off >> 16)} offset:{off & 0xffff}")
                else:
                    off = slot + ((ks >> 1) & 1) * 8192 + nb * 4096
                    sp = 2 * (ks >> 2) + (ks & 1)
                    r.append(f"ds_read_b128 a[{b+4*nb}:{b+4*nb+3}], v{8 + 4*(off >> 16) + sp} offset:{off & 0xffff}")
            return r
        extra = []
        if isD:
            def xl(dst, srdn, sreg, nb, r):
                def f():
                    if (r & 3) == 0 and nb == 0: a(f"s_add_u32 s61, {sreg}, {1024*r}")
                    a.vm(f"buffer_load_short_d16_hi v{dst}, v11, s[{srdn}:{srdn+3}], s61 offen offset:{1024*(r&3) + 64*nb}")
                return f
            for base, srdn, sreg in ((64, 8, "s58"), (96, 20, "s60")):
                for r4 in range(4):
                    for nb in range(2):
                        for r in range(4 * r4, 4 * r4 + 4):
                            extra.append(xl(base + 16 * nb + r, srdn, sreg, nb, r))
            def dsk():
                a.vm("buffer_load_short_d16_hi v6, v24, s[16:19], s59 offen")
                a.vm("buffer_load_short_d16_hi v7, v24, s[16:19], s59 offen offset:64")
            extra.append(dsk)
        stamp(a, 1)
        a.wait(vm=bid[0]); a("s_barrier")
        for r in breads(0): a.ds(r)
        for k in range(nks):
            st, ks = divmod(k, 8)
            a.wait(vm=aid[k], lg=list(a.lgq))
            A = f"a[{4*(k%NA)}:{4*(k%NA)+3}]"
            b = 96 + 8 * (k & 1)
            nxt = breads(k + 1) if k + 1 < nks else []
            for nb in range(2):
                D = f"v[{128+16*nb}:{143+16*nb}]"
                a(f"v_mfma_f32_32x32x16_bf16 {D}, {A}, a[{b+4*nb}:{b+4*nb+3}], {'0' if k == 0 else D}")
                if nb == 0:
                    if ks == 7 and k + 1 < nks:
                        a.wait(vm=bid[st + 1]); a("s_barrier")
                    for r in nxt: a.ds(r)
                else:
                    if k + NA < nks: aload(k + NA)
                    if ks == 0 and st + 3 < nst: bid[st + 3] = bdma(st + 3)
                    if k >= 8 and extra and ks != 0: extra.pop(0)()
            if k == 8: stamp(a, 2)
        assert not extra
        stamp(a, 3)
        if not isD:
            a("s_nop 15")
            for j in range(8):
                if j == 4: a("s_add_u32 s56, s56, 4096")
                a(f"buffer_store_dwordx4 v[{128+4*j}:{131+4*j}], v1, s[20:23], s56 offen offset:{1024*(j&3)} sc1")
            a("""s_waitcnt vmcnt(0) lgkmcnt(0)
            s_or_b32 s27, s27, 1
            v_mov_b32 v2, s27
            v_mov_b32 v3, 0
            s_mov_b64 exec, 1
            buffer_store_dword v2, v3, s[20:23], s57 offen sc1
            s_mov_b64 exec, -1""")
            stamp(a, 4); stamp(a, 5)
        else:
            a(f"""s_waitcnt lgkmcnt(0)
            s_or_b32 s27, s27, 1
            v_mov_b32 v3, 0
            v_mov_b32 v60, {fhex(-LOG2E)}
            v_mov_b32 v61, {fhex(-LOG2E)}
            v_mov_b32 v62, 1.0
            v_mov_b32 v63, 1.0
K2_poll:
            buffer_load_dword v2, v3, s[20:23], s57 offen sc1
            s_waitcnt vmcnt(0)
            v_cmp_ne_u32 vcc, s27, v2
            s_cbranch_vccnz K2_poll""")
            a.vmq = []
            yid = []
            for j in range(8):
                if j == 4: a("s_add_u32 s56, s56, 4096")
                yid.append(a.vm(f"buffer_load_dwordx4 v[{160+4*j}:{163+4*j}], v1, s[20:23], s56 offen offset:{1024*(j&3)} sc1"))
            stamp(a, 4)
            P = lambda r: f"v[{r}:{r+1}]"
            for grp in range(4):
                d = [128 + 8 * grp + 2 * i for i in range(4)]; T = [32 + 2 * i for i in range(4)]
                for i in range(4): a(f"v_pk_mul_f32 {P(T[i])}, {P(d[i])}, v[60:61]")
                for i in range(4): a(f"v_exp_f32 v{T[i]}, v{T[i]}\nv_exp_f32 v{T[i]+1}, v{T[i]+1}")
                for i in range(4): a(f"v_pk_add_f32 {P(T[i])}, {P(T[i])}, v[62:63]")
                for i in range(4): a(f"v_rcp_f32 v{T[i]}, v{T[i]}\nv_rcp_f32 v{T[i]+1}, v{T[i]+1}")
                for i in range(4): a(f"v_pk_mul_f32 {P(d[i])}, {P(d[i])}, {P(T[i])}")
            srd(a, 8, "s50", "s51", 4194304)
            a("""v_lshlrev_b32 v11, 1, v11
            s_lshl_b32 s58, s58, 1""")
            for nb in range(2):
                for r2 in range(8):
                    r = 2 * r2
                    y = 160 + 16 * nb + r
                    a.wait(vm=yid[4 * nb + r // 4])
                    ds = "v[6:7] op_sel_hi:[1,0,1]" if nb == 0 else "v[6:7] op_sel:[0,1,0]"
                    dsr, mod = ds.split(" ")
                    a(f"v_pk_fma_f32 {P(y)}, {P(96+16*nb+r)}, {dsr}, {P(y)} {mod}")
                    a(f"v_pk_fma_f32 {P(y)}, {P(y)}, {P(128+16*nb+r)}, {P(64+16*nb+r)}")
                    a(f"s_add_u32 s61, s58, {2048*r}")
                    a.vm(f"buffer_store_dword v{y}, v11, s[8:11], s61 offen offset:{128*nb}")
                    a.vm(f"buffer_store_dword v{y+1}, v11, s[8:11], s61 offen offset:{128*nb+2048}")
            stamp(a, 5)
        if STAMPS:
            a("s_waitcnt vmcnt(0)"); stamp(a, 6); stamp(a, 7)
            a("v_mov_b32 v0, s26\nv_mbcnt_lo_u32_b32 v0, -1, v0\nv_mbcnt_hi_u32_b32 v0, -1, v0")
        stamp_out(a, 2, 8, 20)
        a("s_endpgm")
    role(True)
    a("K2_Y:")
    role(False)
    return a.text()

def main():
    hdr = f"""; S5 SSM (chunked exact scan) + GEGLU FFN gate + residual, gfx950, generated by gen_v1.py
; @launch kernel=k0_kernel grid=(256,1,1) block=(256,1,1) lds=0
; @launch kernel=k1_kernel grid=(256,1,1) block=(256,1,1) lds={3*STG}
; @launch kernel=k2_kernel grid=(256,1,1) block=(256,1,1) lds=163840
.amdgcn_target "amdgcn-amd-amdhsa--gfx950"
.text
"""
    body = gen_k0() + gen_k1() + gen_k2()
    for m in lint(body): sys.stderr.write("LINT " + m + "\n")
    tail = '.section .rodata,"a"\n.p2align 6\n' + kdesc("k0_kernel", 56, 32, 56) + ".p2align 6\n" + kdesc("k1_kernel", 256 + 72, 102, 256) + ".p2align 6\n" + kdesc("k2_kernel", 256 + 112, 102, 256)
    print(hdr + body + tail)
main()
```

```python
import sys, math
from asmlib import *
NAME = "recurrent_scan__ssm_conv_s5__glu_gated_geglu__prompt"
STAMPS = "--stamps" in sys.argv
def opt(name, default):
    for x in sys.argv:
        if x.startswith(f"--{name}="): return x.split("=", 1)[1]
    return default
NT = opt("nt", "")
PF = int(opt("pf", "0"))
B2PF = int(opt("b2pf", "1"))
ASC = opt("asc", "sc1")
BUD = int(opt("bud", "4"))
CPF = int(opt("cpf", "1"))

WS_EPOCH = 0
WS_ST = 0x100000
WS_CS = 0x180000
WS_A2 = 0x400000
WS_EB = 0xE00000
WS_YB = 0x1000000
WS_FY = 0x1400000
WS_FF = 0x1500000
WS_FH = 0x1600000
WS_STAMP = 0xF000000
LOG2E = 1.4426950408889634
STG = 49152
SLC = 147456
ACC = 128
SB = 80

def srd(a, d, lo, hi, size):
    a(f"s_mov_b32 s{d}, {lo}\ns_mov_b32 s{d+1}, {hi}\ns_mov_b32 s{d+2}, {size}\ns_mov_b32 s{d+3}, 0x00020000")
STSEL = [int(x) for x in opt("st", "0,1,2,3,4,5,6,7").split(",")]
def stamp(a, i):
    if STAMPS and i in STSEL:
        k = STSEL.index(i)
        a(f"{'s_memtime' if '--cyc' in sys.argv else 's_memrealtime'} s[{SB+2*k}:{SB+2*k+1}]")
def stamp_out(a):
    if not STAMPS: return
    L = a.label("L_st")
    a(f"""s_waitcnt vmcnt(0) lgkmcnt(0)
    s_cmp_lg_u32 s26, {opt('stw', '0')}
    s_cbranch_scc1 {L}
    s_mov_b64 exec, 1
    s_lshl_b32 s96, s2, 6
    s_add_u32 s96, s96, {WS_STAMP}
    v_mov_b32 v10, 0""")
    for i in range(0, 8, 2):
        for j in range(4): a(f"v_mov_b32 v{12+j}, s{SB+2*i+j}")
        a(f"buffer_store_dwordx4 v[12:15], v10, s[20:23], s96 offen offset:{8*i}\ns_nop 2")
    a(f"s_waitcnt vmcnt(0)\n{L}:")

def wave_sum(a, regs, tmp):
    for sh in (8, 4, 2, 1):
        a("s_nop 1")
        for r in regs: a(f"v_add_f32_dpp v{r}, v{r}, v{r} row_ror:{sh} row_mask:0xf bank_mask:0xf")
    for op in ("v_permlane16_swap_b32", "v_permlane32_swap_b32"):
        for r, t in zip(regs, tmp): a(f"v_mov_b32 v{t}, v{r}")
        a("s_nop 1")
        for r, t in zip(regs, tmp): a(f"{op} v{t}, v{r}")
        a("s_nop 1")
        for r, t in zip(regs, tmp): a(f"v_add_f32 v{r}, v{r}, v{t}")
def cmul_acc(a, dr, di, lr, li, hr, hi, br, bi):
    a(f"""v_fma_f32 v{dr}, v{lr}, v{hr}, v{br}
    v_fma_f32 v{di}, v{lr}, v{hi}, v{bi}
    v_fma_f32 v{dr}, -v{li}, v{hi}, v{dr}
    v_fma_f32 v{di}, v{li}, v{hr}, v{di}""")
def csq(a, dr, di, sr, si, t):
    a(f"""v_mul_f32 v{t}, v{si}, v{si}
    v_add_f32 v{di}, v{si}, v{si}
    v_mul_f32 v{di}, v{di}, v{sr}
    v_fma_f32 v{dr}, v{sr}, v{sr}, -v{t}""")
SAFE = "--safe" in sys.argv
def bound(x, out):
    if SAFE: x(f"s_add_u32 s58, s58, 1\ns_cmp_gt_u32 s58, 3000\ns_cbranch_scc1 {out}")
P = lambda r: f"v[{r}:{r+1}]"
def LB(j):
    if j < 12: return 98304 + 4096 * j
    if j < 24: return 4096 * (j - 12)
    if j < 32: return 49152 + 4096 * (j - 24)
    if j < 35: return SLC + 4096 * (j - 31)
    if j < 39: return 49152 + 32768 + 4096 * (j - 35)
    if j == 39: return SLC
    return LB(j - 40)
CSL, ELL, RBL = SLC, SLC + 1024, SLC + 3072
TSC = 49152 + 32768

def gen():
    a = Asm()
    tail = Asm()
    K = NAME + "_kernel"
    a(f".globl {K}\n.p2align 8\n.type {K},@function\n{K}:")
    a("s_cmp_ge_u32 s2, 256\ns_cbranch_scc0 L_go\ns_endpgm\nL_go:")
    stamp(a, 0)
    a("""s_load_dwordx16 s[40:55], s[0:1], 0
    s_load_dwordx16 s[56:71], s[0:1], 64
    s_and_b32 s3, s2, 7
    s_lshr_b32 s33, s2, 3            ; loc
    s_and_b32 s24, s3, 1
    s_lshl_b32 s24, s24, 3
    s_and_b32 s34, s33, 7
    s_add_u32 s24, s24, s34          ; mi
    s_lshr_b32 s25, s3, 1
    s_lshl_b32 s25, s25, 2
    s_lshr_b32 s34, s33, 3
    s_add_u32 s25, s25, s34          ; nj
    s_lshl_b32 s31, s3, 1
    s_and_b32 s34, s33, 1
    s_add_u32 s31, s31, s34          ; rt
    s_bfe_u32 s30, s33, 0x10001      ; role (1 = D)
    s_lshr_b32 s32, s33, 2           ; ct
    v_lshrrev_b32 v22, 6, v0
    v_and_b32 v0, 63, v0             ; lane
    v_readfirstlane_b32 s26, v22     ; w
    s_mul_i32 s28, s25, 3
    s_lshl_b32 s29, s25, 1
    s_add_u32 s29, s29, 10
    s_cmp_ge_u32 s25, 11
    s_cselect_b32 s28, s29, s28      ; fbstart
    s_cselect_b32 s29, 1, 0
    v_lshlrev_b32 v15, 4, v0""")
    a("""v_lshrrev_b32 v22, 3, v0          ; a = l>>3
    v_and_b32 v23, 7, v0
    v_lshrrev_b32 v24, 4, v0
    v_xor_b32 v23, v23, v24           ; (l&7)^(l>>4)
    v_lshlrev_b32 v23, 4, v23         ; 16*c (q even)
    v_xor_b32 v24, 64, v23            ; 16*c (q odd)
    v_lshrrev_b32 v25, 2, v22
    v_lshlrev_b32 v25, 4, v25
    v_and_b32 v26, 3, v22
    v_add_u32 v25, v25, v26
    v_lshlrev_b32 v25, 10, v25        ; (16(a>>2)+(a&3))*1024
    v_add_u32 v1, v25, v23
    v_add_u32 v2, v25, v24
    v_add_u32 v3, 6144, v1
    v_add_u32 v4, 9216, v2
    v_add_u32 v2, 3072, v2
    v_lshlrev_b32 v25, 10, v22
    v_add_u32 v5, v25, v23
    v_add_u32 v6, v25, v24
    v_add_u32 v6, 7168, v6
    v_lshrrev_b32 v22, 4, v0          ; l>>4
    v_bfe_u32 v23, v0, 2, 2           ; kk
    v_and_b32 v24, 3, v0
    v_lshlrev_b32 v24, 4, v24         ; (l&3)*16
    s_movk_i32 s33, 2752""")
    for j in range(6):
        a(f"""v_add_u32 v25, {4*j}, v22
        v_mul_u32_u24 v26, 11, v25
        v_lshrrev_b32 v26, 5, v26         ; kq_l = g/3
        v_mul_u32_u24 v27, 3, v26
        v_sub_u32 v27, v25, v27           ; fb = g%3
        v_lshl_add_u32 v26, v26, 2, v23
        v_mul_u32_u24 v26, s33, v26
        v_lshl_add_u32 v26, v27, 6, v26
        v_add_u32 v26, v26, v24
        v_subrev_u32 v{7+j}, {1024*(j&3)}, v26""")
    a("""s_lshl_b32 s34, s24, 7
    s_lshl_b32 s35, s26, 5
    s_add_u32 s34, s34, s35
    s_lshl_b32 s34, s34, 10
    s_and_b32 s36, s26, 1
    s_lshl_b32 s35, s25, 1
    s_add_u32 s35, s35, s36
    s_lshl_b32 s35, s35, 14
    s_mul_i32 s36, s36, 88064        ; 32*2752*(w&1)
    s_lshl_b32 s37, s28, 6
    s_add_u32 s36, s36, s37          ; F base
    s_lshl_b32 s37, s26, 12          ; lds X  4096w
    s_lshl_b32 s38, s26, 11
    s_add_u32 s38, s38, 16384        ; lds B
    s_mul_i32 s39, s26, 6144
    s_add_u32 s39, s39, 24576        ; lds F
    v_and_b32 v22, 31, v0
    s_lshl_b32 s33, s25, 6
    v_lshl_add_u32 v23, v22, 1, s33
    s_waitcnt lgkmcnt(0)""")
    stamp(a, 30)
    a(f"s_load_dword s27, s[70:71], {WS_EPOCH}")
    if SAFE: a("s_mov_b32 s58, 0")
    srd(a, 4, "s42", "s43", 1024)
    p1 = a.vm(f"buffer_load_ushort v40, v23, s[4:7], 0 offen")
    a("s_mov_b32 s4, s44\ns_mov_b32 s5, s45")
    p2 = a.vm(f"buffer_load_ushort v41, v23, s[4:7], 0 offen")
    a("s_mov_b32 s4, s54\ns_mov_b32 s5, s55")
    p3 = a.vm(f"buffer_load_ushort v42, v23, s[4:7], 0 offen")
    srd(a, 8, "s40", "s41", 2097152)
    a("""s_and_b32 s3, s25, 3
    s_lshl_b32 s3, s3, 5
    s_lshl_b32 s33, s24, 7
    s_add_u32 s3, s3, s33
    s_lshr_b32 s33, s25, 2
    s_lshl_b32 s33, s33, 2
    s_add_u32 s33, s33, s26
    s_lshl_b32 s33, s33, 1
    s_add_u32 s97, s33, s3
    s_lshl_b32 s33, s97, 10""")
    st1 = a.vm(f"buffer_load_dwordx4 v[100:103], v15, s[8:11], s33 offen {NT}")
    st2 = a.vm(f"buffer_load_dwordx4 v[104:107], v15, s[8:11], s33 offen offset:1024 {NT}")
    a("""s_cmp_ge_u32 s26, 2
    s_cselect_b32 s12, s48, s46
    s_cselect_b32 s13, s49, s47
    s_mov_b32 s14, 524288
    s_mov_b32 s15, 0x00020000
    s_cselect_b32 s16, s62, s60
    s_cselect_b32 s17, s63, s61
    s_mov_b32 s18, 1409024
    s_mov_b32 s19, 0x00020000""")
    srd(a, 20, "s70", "s71", 0x10000000)
    if PF:
        a("""s_cmp_ge_u32 s26, 2
        s_cbranch_scc1 L_pfw
        s_mov_b32 s4, s40
        s_mov_b32 s5, s41
        s_mov_b32 s6, 2097152
        v_lshrrev_b32 v24, 5, v0
        v_lshlrev_b32 v24, 7, v24
        v_lshl_add_u32 v28, v22, 10, v24
        s_lshl_b32 s98, s3, 10
        s_lshl_b32 s33, s26, 8
        s_add_u32 s98, s98, s33
        s_add_u32 s99, s98, 512
        s_branch L_pfj
L_pfw:
        s_cmp_eq_u32 s26, 2
        s_cselect_b32 s4, s60, s62
        s_cselect_b32 s5, s61, s63
        s_mov_b32 s6, 1409024
        v_lshrrev_b32 v24, 4, v0
        v_lshlrev_b32 v24, 6, v24
        v_bfe_u32 v25, v0, 1, 3
        v_add_u32 v24, v24, v25
        s_movk_i32 s33, 2752
        v_mul_u32_u24 v24, s33, v24
        v_and_b32 v25, 1, v0
        v_lshl_add_u32 v28, v25, 7, v24
        s_and_b32 s98, s24, 7
        s_mul_i32 s98, s98, 22016
        s_lshl_b32 s33, s28, 6
        s_add_u32 s98, s98, s33
        s_add_u32 s99, s98, 704512
L_pfj:""")
        a.vm(f"buffer_load_dword v29, v28, s[4:7], s98 offen {NT}")
    def dma_ops(c):
        slot = (c % 3) * STG
        def x(q):
            def f():
                if q == 0: a(f"s_add_u32 s100, s34, {c*128}\ns_add_u32 m0, s37, {slot}\ns_nop 0")
                return a.vm(f"buffer_load_dwordx4 v{1+q}, s[8:11], s100 offen offset:{1024*q} {NT} lds")
            return f
        def b(q):
            def f():
                if q == 0: a(f"s_add_u32 s100, s35, {c*128}\ns_add_u32 m0, s38, {slot}\ns_nop 0")
                return a.vm(f"buffer_load_dwordx4 v{5+q}, s[12:15], s100 offen offset:{1024*q} {NT} lds")
            return f
        def ff(j):
            def f():
                if j == 0: a(f"s_add_u32 s100, s36, {c*64*2752}\ns_add_u32 m0, s39, {slot}\ns_nop 0")
                if j == 4: a(f"s_add_u32 m0, s39, {slot+4096}\ns_nop 0")
                return a.vm(f"buffer_load_dwordx4 v{7+j}, s[16:19], s100 offen offset:{1024*(j&3)} {NT} lds")
            return f
        return [x(q) for q in range(4)] + [b(q) for q in range(2)] + [ff(j) for j in range(6)]
    dma_ids = {}
    dma_ids[0] = [f() for f in dma_ops(0)]
    stamp(a, 31)
    if PF: a.vm(f"buffer_load_dword v29, v28, s[4:7], s99 offen {NT}")
    if CPF:
        a(f"""s_getpc_b64 s[4:5]
L_pc:
        s_lshr_b32 s33, s2, 3
        s_lshl_b32 s33, s33, 11
        v_and_b32 v24, 15, v0
        v_lshl_add_u32 v24, v24, 7, s33
        v_min_u32 v24, L_codeend-L_pc-4, v24""")
        a.vm("global_load_dword v30, v24, s[4:5]")
    a(f"""s_and_b32 s33, s26, 1
    s_lshl_b32 s59, s24, 1
    s_add_u32 s59, s59, s33
    s_mul_i32 s59, s59, {16*2752}
    s_lshl_b32 s33, s28, 6
    s_add_u32 s59, s59, s33
    s_mul_i32 s68, s26, 3072
    s_add_u32 s68, s68, {SLC}
    s_lshl_b32 s33, s24, 6
    s_add_u32 s69, s35, s33
    v_lshrrev_b32 v24, 2, v0
    v_and_b32 v25, 3, v0
    v_lshlrev_b32 v25, 4, v25
    v_lshl_add_u32 v91, v24, 10, v25""")
    def slice_ops():
        def f(j):
            def g():
                if j == 0: a("s_mov_b32 m0, s68\ns_nop 0")
                if j < 3: return a.vm(f"buffer_load_dwordx4 v{7+j}, s[16:19], s59 offen offset:{1024*j} {NT} lds")
                a(f"s_add_u32 m0, s96, {SLC+12288}\ns_nop 0")
                return a.vm(f"buffer_load_dwordx4 v91, s[12:15], s69 offen {NT} lds")
            return g
        return [f(j) for j in range(4)]
    XA = lambda k, s: 64 + 9 * k + s
    BA = lambda k, s: 64 + 9 * k + 4 + s
    FA = lambda k: 64 + 9 * k + 8
    a("""v_lshrrev_b32 v23, 5, v0          ; h
    v_bfe_u32 v24, v0, 1, 3           ; (i>>1)&7
    v_xor_b32 v24, v24, v23
    v_lshlrev_b32 v24, 4, v24
    v_lshl_add_u32 v24, v22, 7, v24   ; ba[0]
    v_mul_u32_u24 v25, 1536, v23
    v_bfe_u32 v26, v0, 2, 2
    v_lshl_add_u32 v25, v26, 6, v25
    v_bfe_u32 v26, v0, 4, 1
    v_lshl_add_u32 v25, v26, 5, v25
    v_and_b32 v26, 3, v0
    v_lshl_add_u32 v25, v26, 3, v25   ; fa""")
    for k in range(3):
        for s in range(4):
            a(f"v_xor_b32 v26, {32*s}, v24\nv_add_u32 v{BA(k,s)}, {k*STG}, v26\nv_add_u32 v{XA(k,s)}, s37, v{BA(k,s)}")
        a(f"v_add_u32 v{FA(k)}, {k*STG}, v25")
    a("""s_cmp_eq_u32 s30, 0
    s_cbranch_scc1 L_b2y
    s_mov_b32 s72, s64
    s_mov_b32 s73, s65
    s_mov_b32 s76, s64
    s_mov_b32 s77, s65
    s_mov_b32 s74, 1409024
    v_bfe_u32 v26, v0, 2, 2
    v_lshl_add_u32 v26, v23, 2, v26
    v_lshlrev_b32 v26, 10, v26
    v_bfe_u32 v27, v0, 4, 1
    v_lshl_add_u32 v26, v27, 6, v26
    v_and_b32 v27, 3, v0
    v_lshl_add_u32 v13, v27, 4, v26
    s_mul_i32 s101, s32, 5
    s_and_b32 s33, s31, 1
    s_mul_i32 s33, s33, 21
    s_add_u32 s101, s101, s33
    s_sub_u32 s33, s101, 43
    s_cmp_ge_u32 s101, 43
    s_cselect_b32 s101, s33, s101     ; f0
    v_add_u32 v26, s101, v0
    v_subrev_u32 v27, 43, v26
    v_min_u32 v26, v26, v27
    v_min_u32 v26, 42, v26
    s_lshl_b32 s33, s32, 7
    s_lshl_b32 s3, s26, 13
    s_add_u32 s33, s33, s3
    v_lshlrev_b32 v26, 15, v26
    v_add_u32 v14, s33, v26
    s_and_b32 s33, s31, 1
    s_lshl_b32 s33, s33, 2
    s_add_u32 s33, s33, s26
    s_mul_i32 s33, s33, 176128        ; 172 rows
    s_lshl_b32 s3, s32, 7
    s_add_u32 s60, s33, s3
    s_add_u32 s61, s60, 65536
    s_add_u32 s62, s60, 110592
    s_branch L_b2j
L_b2y:
    s_mov_b32 s72, s50
    s_mov_b32 s73, s51
    s_mov_b32 s76, s52
    s_mov_b32 s77, s53
    s_mov_b32 s74, 524288
    s_and_b32 s33, s26, 1
    s_lshl_b32 s33, s33, 6
    v_xor_b32 v13, s33, v5
    s_and_b32 s33, s31, 1
    s_lshl_b32 s33, s33, 2
    s_add_u32 s101, s33, s32
    s_and_b32 s101, s101, 7           ; pc0
    v_lshrrev_b32 v26, 2, v0
    v_add_u32 v26, s101, v26
    v_and_b32 v26, 7, v26
    v_lshlrev_b32 v26, 7, v26
    v_bfe_u32 v27, v0, 1, 1
    v_lshl_add_u32 v26, v27, 15, v26
    s_lshl_b32 s33, s32, 16
    s_lshl_b32 s3, s26, 13
    s_add_u32 s33, s33, s3
    v_add_u32 v14, s33, v26
    s_and_b32 s33, s31, 1
    s_lshl_b32 s33, s33, 2
    s_add_u32 s33, s33, s26
    s_lshl_b32 s33, s33, 7
    s_lshl_b32 s3, s32, 16
    s_add_u32 s60, s33, s3
    s_mov_b32 s61, s60
    s_mov_b32 s62, s60
L_b2j:
    s_mov_b32 s75, 0x00020000
    s_mov_b32 s78, s74
    s_mov_b32 s79, 0x00020000
    s_lshl_b32 s96, s26, 10""")
    def b2_ops(blocks):
        ops = []
        for n, j in enumerate(blocks):
            def f(n=n, j=j):
                rd = lambda q: a(f"v_readlane_b32 s{40+(q&3)}, v14, {blocks[q]}")
                if n == 0:
                    rd(0); rd(1); a(f"s_add_u32 m0, s96, {LB(j)}\ns_nop 2")
                else: a(f"s_add_u32 m0, s96, {LB(j)}")
                if n + 2 < len(blocks): rd(n + 2)
                else: a("s_nop 0")
                sr = 72 + 4 * (j & 1)
                return a.vm(f"buffer_load_dwordx4 v13, s[{sr}:{sr+3}], s{40+(n&3)} offen {NT} lds")
            ops.append(f)
        return ops
    stamp(a, 32)
    a.wait(vm=p3)
    stamp(a, 33)
    a(f"""v_lshlrev_b32 v40, 16, v40        ; Lre
    v_lshlrev_b32 v41, 16, v41        ; Lim
    v_lshlrev_b32 v42, 16, v42        ; log_dt
    v_mul_f32 v42, {fhex(LOG2E)}, v42
    v_exp_f32 v42, v42
    s_nop 0
    v_cvt_pk_bf16_f32 v42, v42, v42
    v_lshlrev_b32 v42, 16, v42        ; dt
    v_mul_f32 v26, v42, v40           ; a
    v_mul_f32 v27, v42, v41           ; b
    v_mul_f32 v26, {fhex(LOG2E)}, v26
    v_mul_f32 v27, {fhex(1/(2*math.pi))}, v27
    v_exp_f32 v26, v26                ; e^a
    v_rndne_f32 v28, v27
    v_sub_f32 v27, v27, v28
    v_mul_f32 v28, 0.5, v27
    v_sin_f32 v27, v27                ; sin b
    v_sin_f32 v28, v28                ; sin b/2
    s_nop 0
    v_mul_f32 v28, v28, v28
    v_mul_f32 v28, -2.0, v28          ; cos b - 1
    v_add_f32 v31, 1.0, v28           ; cos b
    v_mul_f32 v44, v26, v31
    v_mul_f32 v45, v26, v27
    v_add_f32 v26, -1.0, v26
    v_fma_f32 v26, v26, v31, v28
    v_mul_f32 v28, v40, v40
    v_fmac_f32 v28, v41, v41
    v_rcp_f32 v28, v28
    v_mul_f32 v50, v26, v40
    v_fmac_f32 v50, v45, v41
    v_mul_f32 v51, v45, v40
    v_fma_f32 v51, -v26, v41, v51
    v_add_f32 v28, v28, v28
    v_mul_f32 v50, v50, v28
    v_mul_f32 v51, v51, v28""")
    csq(a, 46, 47, 44, 45, 26); csq(a, 48, 49, 46, 47, 26); csq(a, 32, 33, 48, 49, 26); csq(a, 46, 47, 32, 33, 26)
    csq(a, 48, 49, 46, 47, 26); csq(a, 32, 33, 48, 49, 26); csq(a, 48, 49, 32, 33, 26)
    stamp(a, 34)
    dma_ids[1] = [f() for f in dma_ops(1)]
    stamp(a, 35)
    a.wait(vm=st2)
    for src, dst in ((100, 108), (104, 116)):
        for j in range(4):
            a(f"v_lshlrev_b32 v{dst+2*j}, 16, v{src+j}\nv_and_b32 v{dst+2*j+1}, 0xffff0000, v{src+j}")
    for r, dst in enumerate((108, 116)):
        a(f"v_add_f32 v{32+r}, v{dst}, v{dst+1}")
    for j in range(2, 8):
        for r, dst in enumerate((108, 116)): a(f"v_add_f32 v{32+r}, v{32+r}, v{dst+j}")
    wave_sum(a, [32, 33], [34, 35])
    a(f"v_mul_f32 v32, {fhex(1/512)}, v32\nv_mul_f32 v33, {fhex(1/512)}, v33")
    for j in range(8):
        for r, dst in enumerate((108, 116)):
            a(f"v_sub_f32 v{38+r}, v{dst+j}, v{32+r}")
        for r, dst in enumerate((108, 116)):
            a(f"v_mul_f32 v{36+r}, v{38+r}, v{38+r}" if j == 0 else f"v_fmac_f32 v{36+r}, v{38+r}, v{38+r}")
    wave_sum(a, [36, 37], [34, 35])
    a(f"""v_cmp_eq_u32 vcc, 1, v0
    s_waitcnt lgkmcnt(0)
    s_mul_i32 s27, s27, 1664525
    v_cndmask_b32 v32, v32, v33, vcc
    v_cndmask_b32 v36, v36, v37, vcc
    s_add_u32 s27, s27, 1013904223
    v_mul_f32 v36, {fhex(1/512)}, v36
    v_cvt_pk_bf16_f32 v38, v32, v36
    v_lshlrev_b32 v16, 16, v38
    v_and_b32 v36, 0xffff0000, v38
    v_add_f32 v36, {fhex(1e-5)}, v36
    v_cvt_pk_bf16_f32 v36, v36, v36
    v_lshlrev_b32 v36, 16, v36
    v_sqrt_f32 v36, v36
    s_or_b32 s97, s97, 0
    v_cvt_pk_bf16_f32 v36, v36, v36
    v_lshlrev_b32 v18, 16, v36        ; den
    v_rcp_f32 v17, v18
    s_mov_b32 s46, s27
    s_or_b32 s27, s27, 1
    v_mov_b32 v19, s27
    s_lshl_b32 s33, s97, 4
    s_add_u32 s33, s33, {WS_ST}
    s_mov_b64 exec, 3""")
    a.vm("buffer_store_dwordx4 v[16:19], v15, s[20:23], s33 offen sc1")
    a("s_mov_b64 exec, -1")
    for r in range(92, 96): a(f"v_accvgpr_write_b32 a{r}, 0x3f803f80" if False else f"v_mov_b32 v{r}, 0x3f803f80")
    for t in range(9): a(f"v_accvgpr_write_b32 a{73+2*t}, 0")
    a("v_accvgpr_write_b32 a88, 0")
    def reads(c, s):
        k = c % 3; b = 36 * ((4 * c + s) & 1)
        r = [f"ds_read_b128 a[{b}:{b+3}], v{XA(k,s)}", f"ds_read_b128 a[{b+4}:{b+7}], v{BA(k,s)} offset:16384",
             f"ds_read_b128 a[{b+8}:{b+11}], v{BA(k,s)} offset:20480"]
        for fb in range(3):
            for m in range(2):
                for e in range(2):
                    d = b + 12 + 4 * (2 * fb + m) + 2 * e
                    r.append(f"ds_read_b64_tr_b16 a[{d}:{d+1}], v{FA(k)} offset:{24576 + m*12288 + (4*s+e)*768 + fb*256}")
        return r
    def mfma(c, s, j):
        b = 36 * ((4 * c + s) & 1)
        D = f"v[{ACC+16*j}:{ACC+16*j+15}]"
        C = "0" if (c == 0 and s == 0) else D
        X = f"a[{b}:{b+3}]"; W = f"a[{b+4+4*j}:{b+7+4*j}]"
        if j < 2: a(f"v_mfma_f32_32x32x16_bf16 {D}, {X}, {W}, {C}")
        else: a(f"v_mfma_f32_32x32x16_bf16 {D}, {W}, {X}, {C}")
    ids = {}
    side = []
    def S(slot, *items):
        for it in items:
            side.append((slot, (lambda t=it: a(t)) if isinstance(it, str) else it))
    def job_cs_read():
        a(f"""s_cmp_eq_u32 s26, 0
        s_cbranch_scc1 L_cs0""")
        for m in range(2):
            for s in range(2):
                for e in range(2):
                    d = 22 + 8 * m + 4 * s + 2 * e
                    a(f"ds_read_b64_tr_b16 v[{d}:{d+1}], v38 offset:{6144*m + (4*s+e)*768}")
        a(f"""s_branch L_cs1
L_cs0:""")
        for m in range(2):
            for s in range(2):
                d = 22 + 8 * m + 4 * s
                a(f"ds_read_b128 v[{d}:{d+3}], v39 offset:{2048*m + 32*s}")
        a("L_cs1:")
    if B2PF:
        S(33, "v_lshlrev_b32 v63, 10, v0")
        S(44, lambda: a.vm("buffer_load_dword a100, v63, s[72:75], s60 offen"))
        S(76, lambda: a.vm("buffer_load_dword a100, v63, s[76:79], s61 offen"))
        S(108, lambda: a.vm("buffer_load_dword a100, v63, s[72:75], s62 offen"))
    S(40, f"s_lshl_b32 s33, s26, 8\ns_add_u32 s33, s33, {SLC - 256}", f"v_add_u32 v38, s33, v{FA(0)}", "v_and_b32 v39, 31, v0",
      "v_lshrrev_b32 v21, 5, v0", "v_lshlrev_b32 v21, 4, v21", "v_lshl_add_u32 v39, v39, 6, v21", f"v_add_u32 v39, {SLC+12288}, v39",
      "v_and_b32 v20, 31, v0", "v_lshlrev_b32 v20, 4, v20")
    S(70, job_cs_read)
    for n, (s_, m) in enumerate(((0, 0), (0, 1), (1, 0), (1, 1))):
        D = f"v[{96+16*m}:{111+16*m}]"; d = 22 + 8 * m + 4 * s_
        S(78 + 2 * n, f"v_mfma_f32_32x32x16_bf16 {D}, v[92:95], v[{d}:{d+3}], {'0' if s_ == 0 else D}")
    S(92, "s_lshl_b32 s33, s25, 4\ns_add_u32 s33, s33, s24", "s_lshl_b32 s33, s33, 2\ns_add_u32 s33, s33, s26",
      f"s_lshl_b32 s33, s33, 9\ns_add_u32 s47, s33, {WS_CS}", "v_mov_b32 v97, v112", "v_mov_b32 v98, s27", "v_mov_b32 v99, s27",
      lambda: (a("s_mov_b64 exec, 0xffffffff"), a.vm("buffer_store_dwordx4 v[96:99], v20, s[20:23], s47 offen sc1"), a("s_mov_b64 exec, -1")))
    def cs_load(x, q, track):
        s_ = f"buffer_load_dwordx4 v[{96+4*q}:{99+4*q}], v20, s[20:23], s47 offen sc1"
        x(f"s_add_u32 s47, s3, {4096*q}")
        return x.vm(s_) if track else x(s_)
    def st_load(x, track):
        s_ = "buffer_load_dwordx4 v[16:19], v25, s[20:23], s97 offen sc1"
        return x.vm(s_) if track else x(s_)
    S(112, "s_lshl_b32 s3, s25, 15\ns_lshl_b32 s33, s26, 9", f"s_add_u32 s3, s3, s33\ns_add_u32 s3, s3, {WS_CS}",
      f"s_lshr_b32 s97, s34, 6\ns_add_u32 s97, s97, {WS_ST}", "v_bfe_u32 v25, v0, 2, 1", "v_lshlrev_b32 v25, 4, v25", "v_and_b32 v26, 3, v0",
      "v_add_u32 v25, v25, v26", "v_bfe_u32 v26, v0, 3, 2", "v_lshl_add_u32 v25, v26, 2, v25", "v_lshlrev_b32 v27, 2, v25", "v_lshlrev_b32 v25, 4, v25",
      "v_lshrrev_b32 v26, 5, v0", "v_lshl_add_u32 v20, v26, 11, v20")
    S(112, f"s_lshl_b32 s33, s26, 8\ns_add_u32 s33, s33, {CSL}", "v_and_b32 v21, 31, v0", "v_lshl_add_u32 v21, v21, 2, s33",
      f"s_lshl_b32 s33, s26, 7\ns_add_u32 s33, s33, {RBL}", "v_add_u32 v27, s33, v27", "v_lshrrev_b32 v29, 5, v0", "v_lshl_add_u32 v29, v29, 6, s33",
      "v_and_b32 v28, 31, v0", "v_lshlrev_b32 v28, 2, v28", f"v_add_u32 v28, {CSL}, v28", "v_mov_b32 v93, 0", "v_mov_b32 v94, 0", "v_mov_b32 v95, 0")
    ids["cs"] = []
    for q in range(8): S(124 + 4 * q, lambda q=q: ids["cs"].append(cs_load(a, q, True)))
    S(156, lambda: ids["cs"].append(st_load(a, True)))
    def cs_check_ops():
        r = []
        for q in range(0, 8, 2):
            r += [f"v_min3_u32 v22, v{98+4*q}, v{102+4*q}, v{19 if q == 0 else 22}", f"v_max3_u32 v23, v{98+4*q}, v{102+4*q}, v{19 if q == 0 else 23}"]
        r += ["v_xor_b32 v22, s27, v22", "v_xor_b32 v23, s27, v23", "v_or_b32 v22, v22, v23"]
        return r
    S(170, lambda: a.wait(vm=ids["cs"]), *cs_check_ops())
    S(170, "v_cmp_ne_u32 vcc, 0, v22\ns_cbranch_vccnz L_cs_slow\nL_cs_ok:")
    tail("L_cs_slow:"); bound(tail, "L_cs_ok")
    for q in range(8): cs_load(tail, q, False)
    st_load(tail, False); tail("s_waitcnt vmcnt(0)")
    for t in cs_check_ops(): tail(t)
    tail("v_cmp_ne_u32 vcc, 0, v22\ns_cbranch_vccnz L_cs_slow\ns_branch L_cs_ok")
    for q in (0, 2, 4, 6): S(170, f"v_add_f32 v{96+4*q}, v{96+4*q}, v{100+4*q}", f"v_add_f32 v{97+4*q}, v{97+4*q}, v{101+4*q}")
    for q in (0, 4): S(170, f"v_add_f32 v{96+4*q}, v{96+4*q}, v{104+4*q}", f"v_add_f32 v{97+4*q}, v{97+4*q}, v{105+4*q}")
    S(170, "v_add_f32 v96, v96, v112", "v_add_f32 v98, v97, v113", "v_mov_b32 v97, v96", "v_mov_b32 v99, v98\ns_nop 0",
      "v_permlane32_swap_b32 v96, v97", "v_permlane32_swap_b32 v98, v99\ns_nop 0", "v_add_f32 v96, v96, v97", "v_add_f32 v98, v98, v99",
      "v_cvt_pk_bf16_f32 v22, v96, v98", "v_lshlrev_b32 v97, 16, v22", "v_and_b32 v99, 0xffff0000, v22", "v_sub_f32 v96, v96, v97", "v_sub_f32 v98, v98, v99",
      "v_cvt_pk_bf16_f32 v22, v97, v96", "v_cvt_pk_bf16_f32 v23, v99, v98", lambda: a.ds("ds_write2_b32 v21, v22, v23 offset0:0 offset1:32"),
      lambda: a.ds("ds_write_b32 v27, v17"), lambda: ids.__setitem__("cs_done", cur[0]),
      "v_cvt_pk_bf16_f32 v92, -v16, -v16", "v_cmp_gt_u32 vcc, 32, v0\ns_nop 1\nv_cndmask_b32 v92, v93, v92, vcc")
    for t in range(8): S(226, lambda t=t: a.ds(f"ds_read_b32 a{72+2*t}, v28 offset:{128*t}"))
    for q in range(4): S(226, lambda q=q: a.ds(f"ds_read_b128 v[{96+4*q}:{99+4*q}], v29 offset:{16*q}"))
    side.sort(key=lambda t: t[0])
    cur = [0]
    stamp(a, 1)
    a.wait(vm=dma_ids[0]); a("s_barrier")
    stamp(a, 2)
    for r in reads(0, 0): a.ds(r)
    slc = []
    pend = [(f, dma_ids.setdefault(2, [])) for f in dma_ops(2)]
    b2 = []
    for c in range(8):
        for s in range(4):
            a.wait_lg0()
            nxt = reads(c, s + 1) if s < 3 else (reads(c + 1, 0) if c < 7 else [])
            first = 0
            if s == 3 and c < 7:
                mfma(c, s, 0); first = 1
                assert not pend, (c, len(pend))
                a.wait(vm=dma_ids[c + 1] + (slc if c == 1 else [])); a("s_barrier")
                if c == 0: pend += [(f, slc) for f in slice_ops()]
                if c + 3 < 8: pend += [(f, dma_ids.setdefault(c + 3, [])) for f in dma_ops(c + 3)]
                elif c == 5: pend += [(f, b2) for f in b2_ops(list(range(0, 12)))]
                elif c == 6: pend += [(f, b2) for f in b2_ops(list(range(12, 24)) + [32, 33, 34])]
            nslots = 6 - first
            per = -(-len(nxt) // nslots)
            for j in range(first, 8):
                mfma(c, s, j)
                cur[0] = 32 * c + 8 * s + j
                n0 = len(a.lines)
                for _ in range(per):
                    if nxt: a.ds(nxt.pop(0))
                dense = c in (0, 7) or (c == 1 and s < 3)
                if j >= (4 if dense else 5) and pend:
                    f, sink = pend.pop(0); sink.append(f())
                while side and side[0][0] <= cur[0] and len(a.lines) - n0 < BUD:
                    side.pop(0)[1]()
            assert not nxt
        stamp(a, 20 + c)
    assert not side, len(side)
    assert ids["cs_done"] < 32 * 6 + 24, ids["cs_done"]
    while pend:
        f, sink = pend.pop(0); sink.append(f())
    a.wait_lg0()
    for j in range(8):
        D = f"v[{ACC+16*j}:{ACC+16*j+15}]"; W = f"a[{72+2*j}:{75+2*j}]"
        if j < 2: a(f"v_mfma_f32_32x32x16_bf16 {D}, v[92:95], {W}, {D}")
        else: a(f"v_mfma_f32_32x32x16_bf16 {D}, {W}, v[92:95], {D}")
    stamp(a, 3)
    RE, IM = ACC, ACC + 16
    a("s_nop 5")
    for q in range(8):
        a(f"v_pk_mul_f32 {P(RE+2*q)}, {P(RE+2*q)}, {P(96+2*q)}\nv_pk_mul_f32 {P(IM+2*q)}, {P(IM+2*q)}, {P(96+2*q)}")
    for r in range(1, 16):
        s_ = (RE, IM) if r == 1 else ((52, 53) if r & 1 else (54, 55)); d_ = 54 if r & 1 else 52
        cmul_acc(a, d_, d_ + 1, 44, 45, s_[0], s_[1], RE + r, IM + r)
    a(f"""v_and_b32 v22, 31, v0
    v_lshrrev_b32 v23, 5, v0
    v_lshlrev_b32 v24, 3, v22          ; p*8
    v_add_u32 v24, {ELL}, v24
    v_lshl_add_u32 v25, v23, 8, v24
    s_lshl_b32 s33, s26, 9
    v_add_u32 v25, s33, v25""")
    a.ds("ds_write_b64 v25, v[54:55]")
    a.wait_lg0(); a("s_barrier")
    EL = 100
    for j in range(8): a.ds(f"ds_read_b64 v[{EL+2*j}:{EL+2*j+1}], v24 offset:{256*j}")
    pend = b2_ops(list(range(24, 32)))
    b2.append(pend.pop(0)()); b2.append(pend.pop(0)())
    a.wait_lg0()
    a("s_cmp_lg_u32 s26, 0\ns_cbranch_scc1 L_nopub")
    for j in range(1, 8):
        s_ = EL if j == 1 else (52 if j & 1 else 56); d_ = 56 if j & 1 else 52
        cmul_acc(a, d_, d_ + 1, 46, 47, s_, s_ + 1, EL + 2 * j, EL + 2 * j + 1)
    a(f"""v_mov_b32 v58, s27
    v_mov_b32 v59, s27
    s_lshl_b32 s33, s25, 4
    s_add_u32 s33, s33, s24
    s_lshl_b32 s33, s33, 9
    s_add_u32 s33, s33, {WS_EB}
    v_lshlrev_b32 v26, 4, v22
    s_mov_b64 exec, 0xffffffff
    buffer_store_dwordx4 v[56:59], v26, s[20:23], s33 offen sc1
    s_mov_b64 exec, -1
L_nopub:""")
    stamp(a, 4)
    K0c = -2 * math.sqrt(2 / math.pi) * LOG2E
    a(f"""v_mov_b32 v60, {fhex(K0c)}
    v_mov_b32 v61, {fhex(K0c)}
    v_mov_b32 v62, {fhex(K0c*0.044715)}
    v_mov_b32 v63, {fhex(K0c*0.044715)}
    s_lshl_b32 s33, s24, 2
    s_add_u32 s97, s33, s26
    s_mul_i32 s45, s97, {150*1024}
    s_add_u32 s45, s45, {WS_A2}
    s_lshl_b32 s33, s28, 11
    s_add_u32 s3, s33, s45""")
    TB = 160
    def t_loads(x, track):
        r = []
        for j in range(15):
            x(f"v_subrev_u32 v28, {512*(j+1)}, v26")
            s = f"buffer_load_dwordx4 v[{TB+4*j}:{TB+4*j+3}], v28, s[4:7], 0 offen sc1"
            r.append(x.vm(s) if track else x(s))
        s = "buffer_load_dwordx4 v[220:223], v27, s[20:23], s47 offen sc1"
        r.append(x.vm(s) if track else x(s))
        return r
    def t_check(x, lab):
        x("v_mov_b32 v29, 0")
        for j in range(15): x(f"v_cmp_eq_u32 vcc, s27, v{TB+4*j+2}\ns_nop 1\nv_addc_co_u32 v29, vcc, 0, v29, vcc")
        x("v_cmp_eq_u32 vcc, s27, v223\ns_add_u32 s33, s24, 1\ns_nop 0\nv_addc_co_u32 v29, vcc, 0, v29, vcc")
        x(f"v_cmp_ne_u32 vcc, s33, v29\ns_cbranch_vccnz {lab}")
    for fb in range(3):
        G, U = ACC + 32 + 32 * fb, ACC + 48 + 32 * fb
        if fb == 0: a("s_cmp_lg_u32 s29, 0\ns_cbranch_scc1 L_skip0")
        if fb == 2:
            a(f"""s_lshl_b32 s33, s25, 13
            s_add_u32 s33, s33, {WS_EB}
            s_add_u32 s4, s70, s33
            s_addc_u32 s5, s71, 0
            s_mov_b32 s6, 8192
            s_lshl_b32 s33, s24, 9
            v_lshlrev_b32 v27, 4, v22
            v_add_u32 v26, s33, v27
            s_lshl_b32 s33, s31, 2
            s_add_u32 s33, s33, s26
            s_lshl_b32 s33, s33, 9
            s_add_u32 s47, s33, {WS_ST}""")
            tl = t_loads(a, True)
        for e in range(2):
            T = [32 + 2 * i for i in range(4)]
            g = [G + 8 * e + 2 * i for i in range(4)]; u = [U + 8 * e + 2 * i for i in range(4)]
            for i in range(4): a(f"v_pk_mul_f32 {P(g[i])}, {P(g[i])}, v[16:17] op_sel:[0,1]")
            for i in range(4): a(f"v_pk_mul_f32 {P(T[i])}, {P(g[i])}, {P(g[i])}")
            for i in range(4): a(f"v_pk_fma_f32 {P(T[i])}, {P(T[i])}, v[62:63], v[60:61]")
            for i in range(4): a(f"v_pk_mul_f32 {P(T[i])}, {P(T[i])}, {P(g[i])}")
            for i in range(4): a(f"v_exp_f32 v{T[i]}, v{T[i]}\nv_exp_f32 v{T[i]+1}, v{T[i]+1}\nv_pk_mul_f32 {P(u[i])}, {P(u[i])}, {P(g[i])}")
            for i in range(4): a(f"v_pk_fma_f32 {P(T[i])}, {P(T[i])}, v[18:19], v[18:19] op_sel_hi:[1,0,0]")
            for i in range(4): a(f"v_rcp_f32 v{T[i]}, v{T[i]}\nv_rcp_f32 v{T[i]+1}, v{T[i]+1}")
            if fb > 0 and pend:
                b2.append(pend.pop(0)())
                if fb == 1: b2.append(pend.pop(0)())
            for i in range(4): a(f"v_pk_mul_f32 {P(u[i])}, {P(u[i])}, {P(T[i])}")
            for i in range(4): a(f"v_cvt_pk_bf16_f32 v{G+8*e+i}, v{u[i]}, v{u[i]+1}")
            off = 2048 * fb + 1024 * e
            if off == 4096: a("s_add_u32 s3, s3, 4096")
            s_ = f"buffer_store_dwordx4 v[{G+8*e}:{G+8*e+3}], v15, s[20:23], s3 offen offset:{off & 4095} sc1"
            if fb == 0: a(s_)
            else: a.vm(s_)
        if fb == 0: a("L_skip0:")
    assert not pend
    stamp(a, 5)
    a.wait(vm=tl)
    t_check(a, "L_t_slow"); a("L_t_ok:")
    tail("L_t_slow:"); bound(tail, "L_t_ok"); t_loads(tail, False); tail("s_waitcnt vmcnt(0)"); t_check(tail, "L_t_slow"); tail("s_branch L_t_ok")
    a(f"""s_lshl_b32 s33, s26, 8
    s_add_u32 s33, s33, {CSL}
    v_lshl_add_u32 v27, v22, 2, s33
    v_lshl_add_u32 v28, v23, 6, s33""")
    a.ds("ds_write2_b32 v27, v220, v221 offset0:0 offset1:32")
    a.wait_lg0()
    for q in range(8): a.ds(f"ds_read_b128 v[{224+4*q}:{227+4*q}], v28 offset:{128*(q>>2) + 16*(q&3)}")
    for n, j in enumerate(range(13, -1, -1)):
        s_ = (TB + 56) if n == 0 else (52 if n % 2 == 0 else 54); d_ = 54 if n % 2 == 0 else 52
        cmul_acc(a, d_, d_ + 1, 48, 49, s_, s_ + 1, TB + 4 * j, TB + 4 * j + 1)
    a("""s_lshl_b32 s33, s26, 1
    v_add_u32 v23, s33, v23            ; sub
    v_mov_b32 v56, v52
    v_mov_b32 v57, v53""")
    for j in range(7):
        s_, d_ = (52, 54) if j % 2 == 0 else (54, 52)
        a(f"v_cmp_eq_u32 vcc, {j+1}, v23")
        cmul_acc(a, d_, d_ + 1, 46, 47, s_, s_ + 1, EL + 2 * j, EL + 2 * j + 1)
        a(f"v_cndmask_b32 v56, v56, v{d_}, vcc\nv_cndmask_b32 v57, v57, v{d_+1}, vcc")
    a(f"""s_lshl_b32 s33, s97, 4
    s_add_u32 s33, s33, s25
    s_lshl_b32 s44, s33, 7
    s_add_u32 s33, s44, {WS_FF}
    v_mov_b32 v20, s27
    v_mov_b32 v21, 0""")
    a.wait_vm0()
    a("s_mov_b64 exec, 1\nbuffer_store_dword v20, v21, s[20:23], s33 offen sc1\ns_mov_b64 exec, -1")
    def cscale(q):
        a(f"""v_mul_f32 v{160+q}, v50, v{RE+q}
        v_mul_f32 v{176+q}, v50, v{IM+q}
        v_fma_f32 v{160+q}, -v51, v{IM+q}, v{160+q}
        v_fma_f32 v{176+q}, -v51, v{RE+q}, -v{176+q}""")
    for r in range(16):
        hr, hi = (56, 57) if r == 0 else (RE + r - 1, IM + r - 1)
        a(f"""v_fma_f32 v{RE+r}, v44, v{hr}, v{RE+r}
        v_fma_f32 v{IM+r}, v44, v{hi}, v{IM+r}
        v_fma_f32 v{RE+r}, -v45, v{hi}, v{RE+r}
        v_fma_f32 v{IM+r}, v45, v{hr}, v{IM+r}""")
        if r > 0: cscale(r - 1)
    cscale(15)
    for m in range(2):
        for i in range(8): a(f"v_cvt_pk_bf16_f32 v{192+8*m+i}, v{160+16*m+2*i}, v{160+16*m+2*i+1}")
    a(f"""v_lshrrev_b32 v23, 5, v0
    v_lshlrev_b32 v24, 6, v22
    v_lshl_add_u32 v24, v23, 5, v24
    s_add_u32 s33, s37, {TSC}
    v_add_u32 v24, s33, v24""")
    for m in range(2):
        for i in range(2): a.ds(f"ds_write_b128 v24, v[{192+8*m+4*i}:{195+8*m+4*i}] offset:{2048*m+16*i}")
    a("""v_bfe_u32 v25, v0, 2, 2
    v_lshl_add_u32 v25, v23, 3, v25
    v_lshlrev_b32 v25, 6, v25
    v_and_b32 v26, 1, v0
    v_lshl_add_u32 v25, v26, 5, v25
    v_bfe_u32 v26, v0, 4, 1
    v_lshl_add_u32 v25, v26, 4, v25
    v_bfe_u32 v26, v0, 1, 1
    v_lshl_add_u32 v25, v26, 3, v25
    v_add_u32 v25, s33, v25""")
    a.wait_lg0()
    for m in range(2):
        for s in range(2):
            for e in range(2):
                d = 208 + 4 * (2 * m + s) + 2 * e
                a.ds(f"ds_read_b64_tr_b16 v[{d}:{d+1}], v25 offset:{2048*m + 1024*s + 256*e}")
    a(f"s_lshl_b32 s33, s25, 12\ns_add_u32 s33, s33, {86*1024}\ns_add_u32 s33, s33, s45")
    a.wait_lg0()
    for y in range(4):
        a(f"buffer_store_dwordx4 v[{208+4*y}:{211+4*y}], v15, s[20:23], s33 offen offset:{1024*y} sc1")
    stamp(a, 6)
    a(f"""s_lshl_b32 s33, s31, 2
    s_add_u32 s33, s33, s26
    s_lshl_b32 s28, s33, 15
    s_lshl_b32 s29, s32, 7
    s_add_u32 s28, s28, s29
    s_add_u32 m0, s37, {TSC}
    v_lshrrev_b32 v25, 3, v0
    v_and_b32 v26, 7, v0
    v_lshlrev_b32 v26, 4, v26
    v_lshl_add_u32 v25, v25, 10, v26""")
    for q in range(4):
        a(f"s_add_u32 s33, s28, {7168*q}\nbuffer_load_dwordx4 v25, s[8:11], s33 offen offset:{1024*q} lds")
    a(f"""s_lshl_b32 s33, s31, 2
    s_add_u32 s97, s33, s26
    s_mul_i32 s45, s97, {150*1024}
    s_add_u32 s45, s45, {WS_A2}
    s_lshl_b32 s34, s31, 3
    s_add_u32 s34, s34, s32
    s_lshl_b32 s34, s34, 2
    s_add_u32 s34, s34, s26          ; (rt*8+ct)*4+w
    s_lshl_b32 s35, s34, 7
    s_add_u32 s35, s35, {WS_FY}
    s_lshl_b32 s34, s34, 13
    s_add_u32 s34, s34, {WS_YB}
    s_lshl_b32 s36, s97, 11
    s_cmp_eq_u32 s30, 0
    s_cselect_b32 s33, {WS_FH}, 0
    s_cselect_b32 s3, 0, {WS_FF}
    s_add_u32 s36, s36, s33
    s_add_u32 s36, s36, s3
    v_and_b32 v2, 15, v0
    v_lshlrev_b32 v2, 7, v2
    s_add_u32 s33, s44, {WS_FH}""")
    a.wait_vm0()
    a("s_mov_b64 exec, 1\nbuffer_store_dword v20, v21, s[20:23], s33 offen sc1\ns_mov_b64 exec, -1")
    a("s_barrier")
    stamp(a, 7)
    a("L_pollA:"); bound(a, "L_pollAx")
    a("""buffer_load_dword v3, v2, s[20:23], s36 offen sc1
    s_waitcnt vmcnt(0)
    v_cmp_ne_u32 vcc, s27, v3
    s_cbranch_vccnz L_pollA
L_pollAx:""")
    stamp(a, 8)
    a("s_cmp_eq_u32 s30, 0\ns_cbranch_scc1 L_roleY")
    NA = 24
    def role(isD):
        nks = 86 if isD else 64
        a.vmq = []; a.lgq = []
        aid = {}
        def aload(k):
            if isD:
                if k == 0: a("s_lshl_b32 s33, s101, 11\ns_add_u32 s38, s33, s45\n" + f"s_add_u32 s39, s45, {43*2048}")
                elif k % 2 == 0: a(f"s_add_u32 s38, s38, 2048\ns_cmp_ge_u32 s38, s39\ns_cselect_b32 s38, s45, s38")
                off = 1024 * (k & 1)
            else:
                if k % 8 == 0:
                    a(f"s_add_u32 s33, s101, {k//8}\ns_and_b32 s33, s33, 7\ns_lshl_b32 s33, s33, 13\ns_add_u32 s38, s33, s45\ns_add_u32 s38, s38, {86*1024}")
                elif k % 4 == 0: a("s_add_u32 s38, s38, 4096")
                off = 1024 * (k & 3)
            r = 4 * (k % NA)
            aid[k] = a.vm(f"buffer_load_dwordx4 a[{r}:{r+3}], v15, s[20:23], s38 offen offset:{off} {ASC}")
        for k in range(NA): aload(k)
        late = []
        if isD:
            a("""v_lshrrev_b32 v22, 5, v0
            v_lshlrev_b32 v22, 9, v22
            v_bfe_u32 v23, v0, 2, 2
            v_lshl_add_u32 v22, v23, 6, v22
            v_bfe_u32 v23, v0, 4, 1
            v_lshl_add_u32 v22, v23, 5, v22
            v_and_b32 v23, 3, v0
            v_lshl_add_u32 v8, v23, 3, v22
            v_add_u32 v9, 0x10000, v8
            v_add_u32 v10, 0x20000, v8""")
        else:
            for s in range(4):
                a(f"v_mov_b32 v{4+s}, v{BA(0,s)}\nv_add_u32 v{8+s}, 0x10000, v{BA(0,s)}\nv_add_u32 v{16+s}, 0x20000, v{BA(0,s)}")
        def breads(k):
            b = 96 + 8 * (k & 1)
            r = []
            for nb in range(2):
                if isD:
                    for e2 in range(2):
                        off = LB(k >> 1) + (k & 1) * 2048 + e2 * 1024 + nb * 256
                        d = b + 4 * nb + 2 * e2
                        r.append(f"ds_read_b64_tr_b16 a[{d}:{d+1}], v{8 + (off >> 16)} offset:{off & 0xffff}")
                else:
                    i, ks = divmod(k, 8)
                    off = LB(4 * i + 2 * nb + ((ks >> 1) & 1))
                    sp = 2 * (ks >> 2) + (ks & 1)
                    r.append(f"ds_read_b128 a[{b+4*nb}:{b+4*nb+3}], v{(4, 8, 16)[off >> 16] + sp} offset:{off & 0xffff}")
            return r
        for r in breads(0): a.ds(r)
        extra = []
        valu = []
        if isD:
            XR, SK, MM, RR = 64, 96, 224, 240
            srd(a, 4, "s56", "s57", 1024)
            a(f"""v_mov_b32 v6, 0
            v_mov_b32 v7, 0
            v_and_b32 v22, 31, v0
            v_lshrrev_b32 v23, 5, v0
            v_lshlrev_b32 v24, 1, v22
            v_lshl_add_u32 v11, v23, 14, v24      ; h*16*1024 + n*2
            v_lshl_add_u32 v12, v23, 11, v24
            s_add_u32 s33, s37, {TSC}
            v_add_u32 v12, s33, v12""")
            r1ids = []; r2ids = []
            def dsk():
                a.vm("buffer_load_short_d16_hi v6, v24, s[4:7], s29 offen")
                ids["dsk"] = a.vm("buffer_load_short_d16_hi v7, v24, s[4:7], s29 offen offset:64")
            extra.append(dsk)
            for nb in range(2):
                for r in range(0, 16, 2):
                    valu.append(lambda nb=nb, r=r: (a.ds(f"ds_read_u16 v{XR+16*nb+r}, v12 offset:{128*r+64*nb}"), a.ds(f"ds_read_u16 v{XR+16*nb+r+1}, v12 offset:{128*r+128+64*nb}")))
            def skf(nb, r):
                def f():
                    a.wait(vm=ids["dsk"])
                    x_ = XR + 16 * nb + r
                    a(f"""v_lshlrev_b32 v{x_}, 16, v{x_}
                    v_mul_f32 v22, v{RR+r}, v{6+nb}
                    v_sub_f32 v{SK+16*nb+r}, v{x_}, v{MM+r}
                    v_mul_f32 v{SK+16*nb+r}, v{SK+16*nb+r}, v22""")
                return f
            for nb in range(2):
                for r in range(16): valu.append(skf(nb, r))
        R1K, R2K = 20, 66
        for k in range(nks):
            a.wait(vm=aid[k], lg=list(a.lgq))
            A = f"a[{4*(k%NA)}:{4*(k%NA)+3}]"
            b = 96 + 8 * (k & 1)
            nxt = breads(k + 1) if k + 1 < nks else []
            for nb in range(2):
                D = f"v[{128+16*nb}:{143+16*nb}]"
                a(f"v_mfma_f32_32x32x16_bf16 {D}, {A}, a[{b+4*nb}:{b+4*nb+3}], {'0' if k == 0 else D}")
                if nb == 0:
                    if isD and k == R1K:
                        a("s_barrier")
                        r2 = b2_ops(list(range(35, 43)))
                        extra[0:0] = [lambda f=f: r2ids.append(f()) for f in r2]
                    if isD and k == R2K:
                        a.wait(vm=r2ids); a("s_barrier")
                    for r in nxt: a.ds(r)
                else:
                    if k + NA < nks: aload(k + NA)
                    if extra and k % 2 == 0: extra.pop(0)()
                    elif valu and k >= 1 and (k < 18 or k >= 24): valu.pop(0)()
            if k == 8: stamp(a, 9)
        assert not extra and not valu, (len(extra), len(valu))
        stamp(a, 10)
        if not isD:
            a("s_nop 15")
            for j in range(8):
                if j == 4: a("s_add_u32 s34, s34, 4096")
                a(f"buffer_store_dwordx4 v[{128+4*j}:{131+4*j}], v15, s[20:23], s34 offen offset:{1024*(j&3)} sc1")
            a("""s_waitcnt vmcnt(0)
            s_mov_b64 exec, 1
            buffer_store_dword v20, v21, s[20:23], s35 offen sc1
            s_mov_b64 exec, -1""")
            stamp(a, 11); stamp(a, 12)
        else:
            fl = a.vm("buffer_load_dword v3, v21, s[20:23], s35 offen sc1")
            while valu: valu.pop(0)()
            a(f"""v_mov_b32 v60, {fhex(-LOG2E)}
            v_mov_b32 v61, {fhex(-LOG2E)}
            v_mov_b32 v62, 1.0
            v_mov_b32 v63, 1.0
            s_nop 7""")
            def silu(grp):
                d = [128 + 8 * grp + 2 * i for i in range(4)]; T = [32 + 2 * i for i in range(4)]
                for i in range(4): a(f"v_pk_mul_f32 {P(T[i])}, {P(d[i])}, v[60:61]")
                for i in range(4): a(f"v_exp_f32 v{T[i]}, v{T[i]}\nv_exp_f32 v{T[i]+1}, v{T[i]+1}")
                for i in range(4): a(f"v_pk_add_f32 {P(T[i])}, {P(T[i])}, v[62:63]")
                for i in range(4): a(f"v_rcp_f32 v{T[i]}, v{T[i]}\nv_rcp_f32 v{T[i]+1}, v{T[i]+1}")
                for i in range(4): a(f"v_pk_mul_f32 {P(d[i])}, {P(d[i])}, {P(T[i])}")
            silu(0)
            a.wait_vm0()
            a("""v_cmp_eq_u32 vcc, s27, v3
            s_cbranch_vccnz L_yok
L_polly:""")
            bound(a, "L_yok")
            a("""buffer_load_dword v3, v21, s[20:23], s35 offen sc1
            s_waitcnt vmcnt(0)
            v_cmp_ne_u32 vcc, s27, v3
            s_cbranch_vccnz L_polly
L_yok:""")
            yid = []
            for j in range(8):
                if j == 4: a("s_add_u32 s34, s34, 4096")
                yid.append(a.vm(f"buffer_load_dwordx4 v[{160+4*j}:{163+4*j}], v15, s[20:23], s34 offen offset:{1024*(j&3)} sc1"))
            stamp(a, 11)
            for g in range(1, 4): silu(g)
            srd(a, 8, "s66", "s67", 4194304)
            a("v_lshlrev_b32 v11, 1, v11\ns_lshl_b32 s28, s28, 1")
            for nb in range(2):
                for r2 in range(8):
                    r = 2 * r2
                    y = 160 + 16 * nb + r
                    a.wait(vm=yid[4 * nb + r // 4])
                    a(f"v_pk_add_f32 {P(y)}, {P(y)}, {P(SK+16*nb+r)}")
                    a(f"v_pk_fma_f32 {P(y)}, {P(y)}, {P(128+16*nb+r)}, {P(XR+16*nb+r)}")
                    a(f"s_add_u32 s24, s28, {2048*r}")
                    a.vm(f"buffer_store_dword v{y}, v11, s[8:11], s24 offen offset:{128*nb}")
                    a.vm(f"buffer_store_dword v{y+1}, v11, s[8:11], s24 offen offset:{128*nb+2048}")
            a(f"""s_cmp_lg_u32 s97, 0
            s_cbranch_scc1 L_noep
            s_cmp_lg_u32 s32, 0
            s_cbranch_scc1 L_noep
            v_mov_b32 v20, s46
            s_mov_b64 exec, 1
            buffer_store_dword v20, v21, s[20:23], 0 offen offset:{WS_EPOCH}
L_noep:""")
            stamp(a, 12)
        if STAMPS:
            a("s_waitcnt vmcnt(0)"); stamp(a, 13)
        stamp_out(a)
        a("s_endpgm")
    role(True)
    a("L_roleY:")
    role(False)
    return a.text() + tail.text() + "L_codeend:\n    s_endpgm\n"

def main():
    K = NAME + "_kernel"
    hdr = f"""; S5 SSM (exact chunked scan) + GEGLU FFN gate + residual, one fused launch for gfx950 (generated by my gen script)
; @launch grid=(256,1,1) block=(256,1,1) lds=163840
.amdgcn_target "amdgcn-amd-amdhsa--gfx950"
.text
"""
    body = gen()
    for m in lint(body): sys.stderr.write("LINT " + m + "\n")
    tail = f""".section .rodata,"a"
.p2align 6
.amdhsa_kernel {K}
  .amdhsa_next_free_vgpr 368
  .amdhsa_next_free_sgpr 102
  .amdhsa_accum_offset 256
  .amdhsa_group_segment_fixed_size 0
  .amdhsa_kernarg_size 128
  .amdhsa_user_sgpr_count 2
  .amdhsa_user_sgpr_kernarg_segment_ptr 1
  .amdhsa_system_sgpr_workgroup_id_x 1
  .amdhsa_float_denorm_mode_32 3
.end_amdhsa_kernel
"""
    print(hdr + body + tail)
main()
```

```python
import sys, math
from asmlib import *
NAME = "recurrent_scan__ssm_conv_s5__glu_gated_geglu__prompt"
STAMPS = "--stamps" in sys.argv
SAFE = "--safe" in sys.argv
def opt(name, default):
    for x in sys.argv:
        if x.startswith(f"--{name}="): return x.split("=", 1)[1]
    return default
NT1 = opt("nt1", "")
SPLIT = int(opt("split", "1"))
STY = int(opt("sty", "1"))
NA0 = int(opt("na0", "10"))
ASC = opt("asc", "sc1")
OSC = opt("osc", "")
BUD = int(opt("bud", "4"))
CPF = int(opt("cpf", "1"))
B2P = float(opt("b2p", "2.9"))
B2E = opt("b2e", "tail")

WS_EPOCH = 0
WS_ST = 0x100000
WS_CS = 0x180000
WS_A2 = 0x400000
WS_EB = 0xE00000
WS_YB = 0x1000000
WS_FY = 0x1400000
WS_FF = 0x1500000
WS_FH = 0x1600000
WS_STAMP = 0xF000000
LOG2E = 1.4426950408889634
STG = 49152
SLC = 147456
ACC = 128
SB = 80
CSL, ELL, RBL = SLC, SLC + 1024, SLC + 3072
TSC = 49152 + 32768
P = lambda r: f"v[{r}:{r+1}]"

def srd(a, d, lo, hi, size):
    a(f"s_mov_b32 s{d}, {lo}\ns_mov_b32 s{d+1}, {hi}\ns_mov_b32 s{d+2}, {size}\ns_mov_b32 s{d+3}, 0x00020000")
STSEL = [int(x) for x in opt("st", "0,1,2,3,4,5,6,7").split(",")]
def stamp(a, i, drain=False):
    if STAMPS and i in STSEL:
        k = STSEL.index(i)
        a(f"{'s_memtime' if '--cyc' in sys.argv else 's_memrealtime'} s[{SB+2*k}:{SB+2*k+1}]")
        if drain: a.wait_lg0()
def stamp_out(a):
    if not STAMPS: return
    L = a.label("L_st")
    a(f"""s_waitcnt vmcnt(0) lgkmcnt(0)
    s_cmp_lg_u32 s26, {opt('stw', '0')}
    s_cbranch_scc1 {L}
    s_mov_b64 exec, 1
    s_lshl_b32 s96, s2, 6
    s_add_u32 s96, s96, {WS_STAMP}
    v_mov_b32 v10, 0""")
    for i in range(0, 8, 2):
        for j in range(4): a(f"v_mov_b32 v{12+j}, s{SB+2*i+j}")
        a(f"buffer_store_dwordx4 v[12:15], v10, s[20:23], s96 offen offset:{8*i}\ns_nop 2")
    a(f"s_waitcnt vmcnt(0)\n{L}:")
def bound(x, out):
    if SAFE: x(f"s_add_u32 s58, s58, 1\ns_cmp_gt_u32 s58, 3000\ns_cbranch_scc1 {out}")
def L(s): return [l.strip() for l in s.strip("\n").split("\n") if l.strip()]
def wave_sum(regs, tmp):
    r = []
    for sh in (8, 4, 2, 1):
        r.append("s_nop 1")
        r += [f"v_add_f32_dpp v{x}, v{x}, v{x} row_ror:{sh} row_mask:0xf bank_mask:0xf" for x in regs]
    for op in ("v_permlane16_swap_b32", "v_permlane32_swap_b32"):
        r += [f"v_mov_b32 v{t}, v{x}" for x, t in zip(regs, tmp)] + ["s_nop 1"]
        r += [f"{op} v{t}, v{x}" for x, t in zip(regs, tmp)] + ["s_nop 1"]
        r += [f"v_add_f32 v{x}, v{x}, v{t}" for x, t in zip(regs, tmp)]
    return r
def cmul_acc(dr, di, lr, li, hr, hi, br, bi):
    return [f"v_fma_f32 v{dr}, v{lr}, v{hr}, v{br}", f"v_fma_f32 v{di}, v{lr}, v{hi}, v{bi}",
            f"v_fma_f32 v{dr}, -v{li}, v{hi}, v{dr}", f"v_fma_f32 v{di}, v{li}, v{hr}, v{di}"]
def csq(dr, di, sr, si, t):
    return [f"v_mul_f32 v{t}, v{si}, v{si}", f"v_add_f32 v{di}, v{si}, v{si}", f"v_mul_f32 v{di}, v{di}, v{sr}",
            f"v_fma_f32 v{dr}, v{sr}, v{sr}, -v{t}"]
def LB(j):
    if j < 12: return 98304 + 4096 * j
    if j < 24: return 4096 * (j - 12)
    if j < 32: return 49152 + 4096 * (j - 24)
    if j < 35: return SLC + 4096 * (j - 31)
    if j < 39: return TSC + 4096 * (j - 35)
    if j == 39: return SLC
    return LB(j - 40)

def gen():
    a = Asm(); tail = Asm()
    em = lambda ls: [a(x) for x in ls]
    K = NAME + "_kernel"
    a(f".globl {K}\n.p2align 8\n.type {K},@function\n{K}:")
    a("s_cmp_ge_u32 s2, 256\ns_cbranch_scc0 L_go\ns_endpgm\nL_go:")
    stamp(a, 0)
    a("""s_load_dwordx16 s[40:55], s[0:1], 0
    s_load_dwordx16 s[56:71], s[0:1], 64
    s_lshr_b32 s33, s2, 3            ; loc""")
    if CPF:
        a("""s_getpc_b64 s[4:5]
L_pc:
        s_lshl_b32 s3, s33, 10
        v_and_b32 v24, 7, v0
        v_lshl_add_u32 v24, v24, 7, s3
        v_min_u32 v24, L_codeend-L_pc-4, v24""")
        a.vm("global_load_dword a200, v24, s[4:5]")
    a("""s_and_b32 s3, s2, 7
    s_and_b32 s24, s3, 1
    s_lshl_b32 s24, s24, 3
    s_and_b32 s34, s33, 7
    s_add_u32 s24, s24, s34          ; mi
    s_lshr_b32 s25, s3, 1
    s_lshl_b32 s25, s25, 2
    s_lshr_b32 s34, s33, 3
    s_add_u32 s25, s25, s34          ; nj
    s_lshr_b32 s32, s33, 2           ; ct""")
    if SPLIT:
        a("s_and_b32 s31, s3, 3\ns_lshl_b32 s31, s31, 2\ns_and_b32 s34, s33, 3\ns_add_u32 s31, s31, s34\ns_lshr_b32 s30, s3, 2")
    else:
        a("s_lshl_b32 s31, s3, 1\ns_and_b32 s34, s33, 1\ns_add_u32 s31, s31, s34\ns_bfe_u32 s30, s33, 0x10001")
    a("""v_lshrrev_b32 v22, 6, v0
    v_and_b32 v0, 63, v0             ; lane
    v_readfirstlane_b32 s26, v22     ; w
    s_mul_i32 s28, s25, 3
    s_lshl_b32 s29, s25, 1
    s_add_u32 s29, s29, 10
    s_cmp_ge_u32 s25, 11
    s_cselect_b32 s28, s29, s28
    s_cselect_b32 s29, 1, 0
    v_lshlrev_b32 v15, 4, v0
    v_lshrrev_b32 v22, 3, v0          ; a = l>>3
    v_and_b32 v23, 7, v0
    v_lshrrev_b32 v24, 4, v0
    v_xor_b32 v23, v23, v24           ; (l&7)^(l>>4)
    v_lshlrev_b32 v23, 4, v23         ; 16*c (q even)
    v_xor_b32 v24, 64, v23            ; 16*c (q odd)
    v_lshrrev_b32 v25, 2, v22
    v_lshlrev_b32 v25, 4, v25
    v_and_b32 v26, 3, v22
    v_add_u32 v25, v25, v26
    v_lshlrev_b32 v25, 10, v25        ; (16(a>>2)+(a&3))*1024
    v_add_u32 v1, v25, v23
    v_add_u32 v2, v25, v24
    v_add_u32 v3, 6144, v1
    v_add_u32 v4, 9216, v2
    v_add_u32 v2, 3072, v2
    v_lshlrev_b32 v25, 10, v22
    v_add_u32 v5, v25, v23
    v_add_u32 v6, v25, v24
    v_add_u32 v6, 7168, v6
    v_lshrrev_b32 v22, 4, v0          ; l>>4
    v_bfe_u32 v23, v0, 2, 2           ; kk
    v_and_b32 v24, 3, v0
    v_lshlrev_b32 v24, 4, v24         ; (l&3)*16
    s_movk_i32 s33, 2752""")
    for j in range(3):
        a(f"""v_add_u32 v25, {4*j}, v22
        v_mul_u32_u24 v26, 11, v25
        v_lshrrev_b32 v26, 5, v26         ; kq_l = g/3
        v_mul_u32_u24 v27, 3, v26
        v_sub_u32 v27, v25, v27           ; fb = g%3
        v_lshl_add_u32 v26, v26, 2, v23
        v_mul_u32_u24 v26, s33, v26
        v_lshl_add_u32 v26, v27, 6, v26
        v_add_u32 v26, v26, v24
        v_subrev_u32 v{7+j}, {1024*j}, v26
        v_add_u32 v{10+j}, {16*2752 - 1024*((j+3)&3)}, v26""")
    a("""s_lshl_b32 s34, s24, 7
    s_lshl_b32 s35, s26, 5
    s_add_u32 s34, s34, s35
    s_lshl_b32 s34, s34, 10
    s_and_b32 s36, s26, 1
    s_lshl_b32 s35, s25, 1
    s_add_u32 s35, s35, s36
    s_lshl_b32 s35, s35, 14
    s_mul_i32 s36, s36, 88064        ; 32*2752*(w&1)
    s_lshl_b32 s37, s28, 6
    s_add_u32 s36, s36, s37          ; F base
    s_lshl_b32 s37, s26, 12          ; lds X  4096w
    s_lshl_b32 s38, s26, 11
    s_add_u32 s38, s38, 16384        ; lds B
    s_mul_i32 s39, s26, 6144
    s_add_u32 s39, s39, 24576        ; lds F
    s_lshl_b32 s96, s26, 10
    v_and_b32 v22, 31, v0
    s_lshl_b32 s33, s25, 6
    v_lshl_add_u32 v23, v22, 1, s33
    s_add_u32 s33, s25, s24
    s_and_b32 s33, s33, 3
    s_lshl_b32 s98, s33, 8
    s_and_b32 s3, s25, 3
    s_lshl_b32 s3, s3, 5
    s_lshl_b32 s33, s24, 7
    s_add_u32 s3, s3, s33
    s_lshr_b32 s33, s25, 2
    s_lshl_b32 s33, s33, 2
    s_add_u32 s33, s33, s26
    s_lshl_b32 s33, s33, 1
    s_add_u32 s97, s33, s3
    s_lshl_b32 s99, s97, 10
    s_mov_b32 s10, 2097152
    s_mov_b32 s11, 0x00020000
    s_mov_b32 s14, 524288
    s_mov_b32 s15, 0x00020000
    s_mov_b32 s18, 1409024
    s_mov_b32 s19, 0x00020000
    s_mov_b32 s22, 0x10000000
    s_mov_b32 s23, 0x00020000
    s_mov_b32 s6, 1024
    s_mov_b32 s7, 0x00020000
    s_cmp_ge_u32 s26, 2
    s_waitcnt lgkmcnt(0)""")
    stamp(a, 30)
    a(f"""s_mov_b32 s8, s40
    s_mov_b32 s9, s41
    s_cselect_b32 s12, s48, s46
    s_cselect_b32 s13, s49, s47
    s_cselect_b32 s16, s62, s60
    s_cselect_b32 s17, s63, s61
    s_mov_b32 s59, s98
    s_mul_i32 s68, s59, 1376
    s_load_dword s27, s[70:71], {WS_EPOCH}""")
    if SAFE: a("s_mov_b32 s58, 0")
    def dma_ops(c):
        slot = (c % 3) * STG
        def x(q):
            def f():
                if q == 0: a(f"s_add_u32 m0, s37, {slot}\ns_add_u32 s100, s34, s59")
                return a.vm(f"buffer_load_dwordx4 v{1+q}, s[8:11], s100 offen offset:{1024*q} {NT1} lds")
            return (3 if q == 0 else 1, f)
        def b(q):
            def f():
                if q == 0: a(f"s_add_u32 m0, s38, {slot}\ns_add_u32 s100, s35, s59")
                return a.vm(f"buffer_load_dwordx4 v{5+q}, s[12:15], s100 offen offset:{1024*q} {NT1} lds")
            return (3 if q == 0 else 1, f)
        def ff(j):
            def f():
                if j == 0: a(f"s_add_u32 m0, s39, {slot}\ns_add_u32 s100, s36, s68")
                if j == 4: a(f"s_add_u32 m0, s39, {slot+4096}\ns_add_u32 s59, s59, 128")
                r = a.vm(f"buffer_load_dwordx4 v{7+j}, s[16:19], s100 offen offset:{1024*(j&3)} {NT1} lds")
                if j == 5: a("s_and_b32 s59, s59, 1023\ns_mul_i32 s68, s59, 1376")
                return r
            return (3 if j in (0, 4, 5) else 1, f)
        return [x(q) for q in range(4)] + [b(q) for q in range(2)] + [ff(j) for j in range(6)]
    dma_ids = {c: [] for c in range(8)}
    st1 = a.vm(f"buffer_load_dwordx4 v[100:103], v15, s[8:11], s99 offen {NT1}")
    st2 = a.vm(f"buffer_load_dwordx4 v[104:107], v15, s[8:11], s99 offen offset:1024 {NT1}")
    a("s_mov_b32 s4, s42\ns_mov_b32 s5, s43")
    a.vm(f"buffer_load_ushort v40, v23, s[4:7], 0 offen")
    a("s_mov_b32 s4, s44\ns_mov_b32 s5, s45")
    a.vm(f"buffer_load_ushort v41, v23, s[4:7], 0 offen")
    a("s_mov_b32 s4, s54\ns_mov_b32 s5, s55")
    p3 = a.vm(f"buffer_load_ushort v42, v23, s[4:7], 0 offen")
    for _, f in dma_ops(0): dma_ids[0].append(f())
    stamp(a, 31)
    a("s_mov_b32 s20, s70\ns_mov_b32 s21, s71")
    XA = lambda k, s: 64 + 9 * k + s
    BA = lambda k, s: 64 + 9 * k + 4 + s
    FA = lambda k: 64 + 9 * k + 8
    a("""v_lshrrev_b32 v23, 5, v0          ; h
    v_bfe_u32 v24, v0, 1, 3           ; (i>>1)&7
    v_xor_b32 v24, v24, v23
    v_lshlrev_b32 v24, 4, v24
    v_lshl_add_u32 v24, v22, 7, v24   ; ba[0]
    v_mul_u32_u24 v25, 1536, v23
    v_bfe_u32 v26, v0, 2, 2
    v_lshl_add_u32 v25, v26, 6, v25
    v_bfe_u32 v26, v0, 4, 1
    v_lshl_add_u32 v25, v26, 5, v25
    v_and_b32 v26, 3, v0
    v_lshl_add_u32 v25, v26, 3, v25   ; fa""")
    for k in range(3):
        for s in range(4):
            a(f"v_xor_b32 v26, {32*s}, v24\nv_add_u32 v{BA(k,s)}, {k*STG}, v26\nv_add_u32 v{XA(k,s)}, s37, v{BA(k,s)}")
        a(f"v_add_u32 v{FA(k)}, {k*STG}, v25")
    a("""s_cmp_eq_u32 s30, 0
    s_cbranch_scc1 L_b2y
    s_mov_b32 s72, s64
    s_mov_b32 s73, s65
    s_mov_b32 s76, s64
    s_mov_b32 s77, s65
    s_mov_b32 s74, 1409024
    v_bfe_u32 v26, v0, 2, 2
    v_lshl_add_u32 v26, v23, 2, v26
    v_lshlrev_b32 v26, 10, v26
    v_bfe_u32 v27, v0, 4, 1
    v_lshl_add_u32 v26, v27, 6, v26
    v_and_b32 v27, 3, v0
    v_lshl_add_u32 v13, v27, 4, v26
    s_mul_i32 s101, s32, 5""")
    if SPLIT: a("s_and_b32 s33, s31, 3\ns_mul_i32 s33, s33, 11\ns_add_u32 s101, s101, s33\ns_lshr_b32 s33, s31, 2\ns_mul_i32 s33, s33, 3")
    else: a("s_and_b32 s33, s31, 1\ns_mul_i32 s33, s33, 22\ns_add_u32 s101, s101, s33\ns_lshr_b32 s33, s31, 1\ns_mul_i32 s33, s33, 3")
    a("""s_add_u32 s101, s101, s33
    s_and_b32 s101, s101, 0xfe
    s_sub_u32 s33, s101, 42
    s_cmp_ge_u32 s101, 42
    s_cselect_b32 s101, s33, s101     ; f0 (even)
    v_add_u32 v26, s101, v0
    v_subrev_u32 v27, 42, v26
    v_cmp_lt_u32 vcc, 41, v0
    v_min_u32 v26, v26, v27
    s_lshl_b32 s33, s32, 7
    v_cndmask_b32 v26, v26, 42, vcc
    s_lshl_b32 s3, s26, 13
    s_add_u32 s33, s33, s3
    v_lshlrev_b32 v26, 15, v26
    v_add_u32 v14, s33, v26
    s_branch L_b2j
L_b2y:
    s_mov_b32 s72, s50
    s_mov_b32 s73, s51
    s_mov_b32 s76, s52
    s_mov_b32 s77, s53
    s_mov_b32 s74, 524288
    s_and_b32 s33, s26, 1
    s_lshl_b32 s33, s33, 6
    v_xor_b32 v13, s33, v5""")
    if SPLIT: a("s_lshl_b32 s33, s31, 1\ns_add_u32 s101, s33, s32\ns_lshr_b32 s33, s31, 2")
    else: a("s_lshl_b32 s33, s31, 2\ns_add_u32 s101, s33, s32\ns_lshr_b32 s33, s31, 1")
    a(f"""s_add_u32 s101, s101, s33
    s_and_b32 s101, s101, 7           ; pc0
    v_lshrrev_b32 v26, 2, v0
    v_add_u32 v26, s101, v26
    v_and_b32 v26, 7, v26
    v_lshlrev_b32 v26, 7, v26
    v_bfe_u32 v27, v0, 1, 1
    v_lshl_add_u32 v26, v27, 15, v26
    s_lshl_b32 s33, s32, 16
    s_lshl_b32 s3, s26, 13
    s_add_u32 s33, s33, s3
    v_add_u32 v14, s33, v26
L_b2j:
    s_mov_b32 s75, 0x00020000
    s_mov_b32 s78, s74
    s_mov_b32 s79, 0x00020000
    s_lshr_b32 s3, s24, 3             ; column-sum job: half chunk (mi>>3) of stage (mi>>2)&1
    s_mul_i32 s33, s3, 6144
    s_lshl_b32 s47, s26, 8
    s_add_u32 s33, s33, s47
    s_add_u32 s33, s33, {24576 - 256}
    v_add_u32 v38, s33, v{FA(0)}
    s_lshl_b32 s33, s3, 6
    v_xor_b32 v39, s33, v{BA(0,0)}
    v_xor_b32 v21, s33, v{BA(0,1)}
    s_bitcmp1_b32 s24, 2
    s_cselect_b32 s33, {STG}, 0
    v_add_u32 v38, s33, v38
    v_add_u32 v39, s33, v39
    v_add_u32 v21, s33, v21
    v_lshlrev_b32 v20, 4, v22
    s_lshl_b32 s33, s25, 4
    s_add_u32 s33, s33, s24
    s_lshl_b32 s33, s33, 2
    s_add_u32 s33, s33, s26
    s_lshl_b32 s33, s33, 9
    s_add_u32 s47, s33, {WS_CS}""")
    for r in range(92, 96): a(f"v_mov_b32 v{r}, 0x3f803f80")
    for t in range(9): a(f"v_accvgpr_write_b32 a{73+2*t}, 0")
    a("v_accvgpr_write_b32 a88, 0\nv_accvgpr_write_b32 a120, 0\nv_accvgpr_write_b32 a121, 0")
    def b2_ops(blocks):
        ops = []
        for n, j in enumerate(blocks):
            def f(n=n, j=j):
                rd = lambda q: a(f"v_readlane_b32 s{40+(q&3)}, v14, {blocks[q]}")
                if n == 0:
                    rd(0); rd(1); a(f"s_add_u32 m0, s96, {LB(j)}\ns_nop 2")
                else: a(f"s_add_u32 m0, s96, {LB(j)}")
                if n + 2 < len(blocks): rd(n + 2)
                else: a("s_nop 0")
                sr = 72 + 4 * (j & 1)
                return a.vm(f"buffer_load_dwordx4 v13, s[{sr}:{sr+3}], s{40+(n&3)} offen lds")
            ops.append(f)
        return ops
    stamp(a, 32)
    sm = []
    for src, dst in ((100, 108), (104, 116)):
        for j in range(4): sm += [f"v_lshlrev_b32 v{dst+2*j}, 16, v{src+j}", f"v_and_b32 v{dst+2*j+1}, 0xffff0000, v{src+j}"]
    sm += [f"v_add_f32 v{32+r}, v{dst}, v{dst+1}" for r, dst in enumerate((108, 116))]
    for j in range(2, 8): sm += [f"v_add_f32 v{32+r}, v{32+r}, v{dst+j}" for r, dst in enumerate((108, 116))]
    sm += wave_sum([32, 33], [34, 35])
    sm += [f"v_mul_f32 v32, {fhex(1/512)}, v32", f"v_mul_f32 v33, {fhex(1/512)}, v33"]
    for j in range(8):
        sm += [f"v_sub_f32 v{30+r}, v{dst+j}, v{32+r}" for r, dst in enumerate((108, 116))]
        sm += [(f"v_mul_f32 v{36+r}, v{30+r}, v{30+r}" if j == 0 else f"v_fmac_f32 v{36+r}, v{30+r}, v{30+r}") for r in range(2)]
    sm += wave_sum([36, 37], [34, 35])
    sm += L(f"""v_cmp_eq_u32 vcc, 1, v0
    s_waitcnt lgkmcnt(0)
    s_mul_i32 s27, s27, 1664525
    v_cndmask_b32 v32, v32, v33, vcc
    v_cndmask_b32 v36, v36, v37, vcc
    s_add_u32 s27, s27, 1013904223
    v_mul_f32 v36, {fhex(1/512)}, v36
    v_cvt_pk_bf16_f32 v30, v32, v36
    v_lshlrev_b32 v16, 16, v30
    v_and_b32 v36, 0xffff0000, v30
    v_add_f32 v36, {fhex(1e-5)}, v36
    v_cvt_pk_bf16_f32 v36, v36, v36
    v_lshlrev_b32 v36, 16, v36
    v_sqrt_f32 v36, v36
    s_mov_b32 s46, s27
    v_cvt_pk_bf16_f32 v36, v36, v36
    v_lshlrev_b32 v18, 16, v36
    v_rcp_f32 v17, v18
    s_or_b32 s27, s27, 1
    v_mov_b32 v19, s27
    s_lshl_b32 s33, s97, 4
    s_add_u32 s33, s33, {WS_ST}""")
    pm = L(f"""v_lshlrev_b32 v40, 16, v40
    v_lshlrev_b32 v41, 16, v41
    v_lshlrev_b32 v42, 16, v42
    v_mul_f32 v42, {fhex(LOG2E)}, v42
    v_exp_f32 v42, v42
    s_nop 0
    v_cvt_pk_bf16_f32 v42, v42, v42
    v_lshlrev_b32 v42, 16, v42
    v_mul_f32 v26, v42, v40
    v_mul_f32 v27, v42, v41
    v_mul_f32 v26, {fhex(LOG2E)}, v26
    v_mul_f32 v27, {fhex(1/(2*math.pi))}, v27
    v_exp_f32 v26, v26
    v_rndne_f32 v28, v27
    v_sub_f32 v27, v27, v28
    v_mul_f32 v28, 0.5, v27
    v_sin_f32 v27, v27
    v_sin_f32 v28, v28
    s_nop 0
    v_mul_f32 v28, v28, v28
    v_mul_f32 v28, -2.0, v28
    v_add_f32 v31, 1.0, v28
    v_mul_f32 v44, v26, v31
    v_mul_f32 v45, v26, v27
    v_add_f32 v26, -1.0, v26
    v_fma_f32 v26, v26, v31, v28
    v_mul_f32 v28, v40, v40
    v_fmac_f32 v28, v41, v41
    v_rcp_f32 v28, v28
    v_mul_f32 v50, v26, v40
    v_fmac_f32 v50, v45, v41
    v_mul_f32 v51, v45, v40
    v_fma_f32 v51, -v26, v41, v51
    v_add_f32 v28, v28, v28
    v_mul_f32 v50, v50, v28
    v_mul_f32 v51, v51, v28""")
    pm += csq(46, 47, 44, 45, 26) + csq(48, 49, 46, 47, 26) + csq(32, 33, 48, 49, 26) + csq(46, 47, 32, 33, 26)
    pm += csq(48, 49, 46, 47, 26) + csq(32, 33, 48, 49, 26) + csq(48, 49, 32, 33, 26) + csq(58, 59, 48, 49, 26)
    d1 = dma_ops(1)
    D1S = int(opt("d1s", "60")); D1P = int(opt("d1p", "11"))
    a.wait(vm=st2)
    stamp(a, 33)
    n = 0
    for blk in (sm, pm):
        if blk is pm:
            a("s_mov_b64 exec, 3"); a.vm("buffer_store_dwordx4 v[16:19], v15, s[20:23], s33 offen sc1"); a("s_mov_b64 exec, -1")
            a.wait(vm=p3)
        for ln in blk:
            a(ln); n += 1
            if n >= D1S and (n - D1S) % D1P == 0 and d1: dma_ids[1].append(d1.pop(0)[1]())
    while d1: dma_ids[1].append(d1.pop(0)[1]())
    slots = []; frag = {}; order = []
    def fr(key, txt, stage, regs):
        frag[key] = dict(txt=txt, stage=stage, regs=regs, ids=[]); order.append(key)
    def fregs(c, s):
        b = 36 * ((4 * c + s) & 1)
        if c == 7: return 124 + 4 * s, 140 + 8 * s, b + 12
        return b, b + 4, b + 12
    for c in range(8):
        k = c % 3
        for s in range(4):
            x_, b_, f_ = fregs(c, s)
            def smm():
                fr(("X", c, s), [f"ds_read_b128 a[{x_}:{x_+3}], v{XA(k,s)}"], c, x_)
                fr(("W", c, s, 0), [f"ds_read_b128 a[{b_}:{b_+3}], v{BA(k,s)} offset:16384"], c, b_)
                fr(("W", c, s, 1), [f"ds_read_b128 a[{b_+4}:{b_+7}], v{BA(k,s)} offset:20480"], c, b_ + 4)
            smm()
            if c < 7:
                for j in range(2, 8):
                    fb, m = divmod(j - 2, 2); d = f_ + 4 * (j - 2)
                    fr(("W", c, s, j), [f"ds_read_b64_tr_b16 a[{d+2*e}:{d+2*e+1}], v{FA(k)} offset:{24576 + m*12288 + (4*s+e)*768 + fb*256}" for e in range(2)], c, d)
    for s in range(4):
        for j in range(2, 8):
            fb, m = divmod(j - 2, 2); d = fregs(7, s)[2] + 4 * (j - 2)
            fr(("W", 7, s, j), [f"ds_read_b64_tr_b16 a[{d+2*e}:{d+2*e+1}], v{FA(1)} offset:{24576 + m*12288 + (4*s+e)*768 + fb*256}" for e in range(2)], 7, d)
    def mslot(c, s, j):
        D = f"v[{ACC+16*j}:{ACC+16*j+15}]"; C = "0" if (c == 0 and s == 0) else D
        xr = frag[("X", c, s)]["regs"]; wr = frag[("W", c, s, j)]["regs"]
        X = f"a[{xr}:{xr+3}]"; W = f"a[{wr}:{wr+3}]"
        slots.append((f"v_mfma_f32_32x32x16_bf16 {D}, {X}, {W}, {C}" if j < 2 else f"v_mfma_f32_32x32x16_bf16 {D}, {W}, {X}, {C}",
                      [("X", c, s), ("W", c, s, j)]))
    def aug(j):
        D = f"v[{ACC+16*j}:{ACC+16*j+15}]"; W = f"a[{72+2*j}:{75+2*j}]"
        slots.append((f"v_mfma_f32_32x32x16_bf16 {D}, v[92:95], {W}, {D}" if j < 2 else f"v_mfma_f32_32x32x16_bf16 {D}, {W}, v[92:95], {D}", [("AUG", 0 if j < 1 else 1)] if j != 1 else [("AUG", 0), ("AUG", 1)]))
    for c in range(7):
        for s in range(4):
            for j in range(8): mslot(c, s, j)
    for s in range(4):
        for j in range(2): mslot(7, s, j)
    aug(0); aug(1)
    for s in range(4):
        for j in range(2, 8): mslot(7, s, j)
    for j in range(2, 8): aug(j)
    NS = len(slots)
    fr(("AUG", 0), [f"ds_read_b32 a{72+2*t}, v28 offset:{128*t}" for t in range(2)] + [f"ds_read_b128 v[{96+4*q}:{99+4*q}], v29 offset:{16*q}" for q in range(4)], 7, 300)
    fr(("AUG", 1), [f"ds_read_b32 a{72+2*t}, v28 offset:{128*t}" for t in range(2, 8)], 7, 304)
    need = {}; lastuse = {}
    for i, (_, keys) in enumerate(slots):
        for kx in keys: need.setdefault(kx, i); lastuse[kx] = i
    BAR = {c: 32 * c + (24 if STY else 25) for c in range(7)}
    owner = {}
    rq = []
    for kx in sorted(order, key=lambda q: need[q]):
        f = frag[kx]
        e = 0 if f["stage"] == 0 else BAR[f["stage"] - 1]
        for r in range(f["regs"], f["regs"] + 4):
            if r in owner: e = max(e, lastuse[owner[r]] + 1)
            owner[r] = kx
        dl = need[kx] - 3
        if f["stage"] < 7: dl = min(dl, BAR[f["stage"]] - 3)
        for t in f["txt"]: rq.append(dict(e=max(e, (need[kx] // 8 - 1) * 8 if (STY and need[kx] < 224) else need[kx] - 10), dl=dl, t=t, k=kx))
    ids = {}
    side = []
    def S(slot, *items):
        for it in items:
            if isinstance(it, str): side.append((slot, len(L(it)), (lambda t=it: a(t))))
            elif isinstance(it, tuple): side.append((slot, it[0], it[1]))
            else: side.append((slot, 1, it))
    def job_cs_read(st):
        a(f"s_bitcmp{1-st}_b32 s24, 2\ns_cbranch_scc1 L_cs1_{st}\ns_waitcnt lgkmcnt(7)\ns_cmp_eq_u32 s26, 0\ns_cbranch_scc1 L_cs0_{st}")
        for m in range(2):
            for s in range(2):
                for e in range(2):
                    d = 176 + 8 * m + 4 * s + 2 * e
                    a(f"ds_read_b64_tr_b16 a[{d}:{d+1}], v38 offset:{12288*m + (4*s+e)*768}")
        a(f"s_branch L_cs1_{st}\nL_cs0_{st}:")
        for m in range(2):
            for s in range(2):
                d = 176 + 8 * m + 4 * s
                a(f"ds_read_b128 a[{d}:{d+3}], v{(39, 21)[s]} offset:{16384 + 4096*m}")
        a(f"L_cs1_{st}:")
    S(10, (2, lambda: job_cs_read(0)))
    S(42, (2, lambda: job_cs_read(1)))
    for n, (s_, m) in enumerate(((0, 0), (0, 1), (1, 0), (1, 1))):
        D = f"v[{96+16*m}:{111+16*m}]"; d = 176 + 8 * m + 4 * s_
        S(60 + 2 * n, f"v_mfma_f32_32x32x16_bf16 {D}, v[92:95], a[{d}:{d+3}], {'0' if s_ == 0 else D}")
    S(72, "v_mov_b32 v97, v112", "v_mov_b32 v98, s27", "v_mov_b32 v99, s27",
      (3, lambda: (a("s_mov_b64 exec, 0xffffffff"), a.vm("buffer_store_dwordx4 v[96:99], v20, s[20:23], s47 offen sc1"), a("s_mov_b64 exec, -1"))))
    def cs_load(x, q, track):
        s_ = f"buffer_load_dwordx4 v[{96+4*q}:{99+4*q}], v33, s[20:23], s47 offen sc1"
        x(f"s_add_u32 s47, s3, {4096*q}")
        return x.vm(s_) if track else x(s_)
    def st_load(x, track, q):
        s_ = ("buffer_load_dwordx4 v[16:19], v25, s[20:23], s97 offen sc1", "buffer_load_dwordx4 v[52:55], v20, s[20:23], s60 offen sc1")[q]
        return x.vm(s_) if track else x(s_)
    S(12, "s_lshl_b32 s3, s25, 15", "s_lshl_b32 s33, s26, 9", "s_add_u32 s3, s3, s33", f"s_add_u32 s3, s3, {WS_CS}",
      "s_lshr_b32 s97, s34, 6", f"s_add_u32 s97, s97, {WS_ST}", "v_bfe_u32 v25, v0, 2, 1", "v_lshlrev_b32 v25, 4, v25", "v_and_b32 v26, 3, v0",
      "v_add_u32 v25, v25, v26", "v_bfe_u32 v26, v0, 3, 2", "v_lshl_add_u32 v25, v26, 2, v25", "v_lshlrev_b32 v27, 2, v25", "v_lshlrev_b32 v25, 4, v25",
      "v_lshrrev_b32 v26, 5, v0", "v_lshl_add_u32 v33, v26, 11, v20",
      "s_lshl_b32 s33, s26, 8", f"s_add_u32 s33, s33, {CSL}", "v_and_b32 v32, 31, v0", "v_lshl_add_u32 v32, v32, 2, s33",
      "s_lshl_b32 s33, s26, 7", f"s_add_u32 s33, s33, {RBL}", "v_add_u32 v27, s33, v27", "v_lshl_add_u32 v29, v26, 6, s33",
      "v_and_b32 v28, 31, v0", "v_lshlrev_b32 v28, 2, v28", f"v_add_u32 v28, {CSL}, v28",
      "s_lshl_b32 s33, s31, 2", "s_add_u32 s33, s33, s26", "s_lshl_b32 s60, s33, 9", f"s_add_u32 s60, s60, {WS_ST}",
      "s_lshl_b32 s62, s33, 15", "s_lshl_b32 s63, s32, 7", "s_add_u32 s62, s62, s63",
      "v_lshrrev_b32 v34, 3, v0", "v_and_b32 v35, 7, v0", "v_lshlrev_b32 v35, 4, v35", "v_lshl_add_u32 v34, v34, 10, v35",
      "v_and_b32 v35, 31, v0", "v_lshlrev_b32 v35, 1, v35", "s_mov_b32 s4, s56", "s_mov_b32 s5, s57")
    S(80, "v_mov_b32 v93, 0", "v_mov_b32 v94, 0", "v_mov_b32 v95, 0")
    ids["cs"] = []
    CSS = int(opt("css", "108"))
    for q in range(8): S(CSS + 3 * q, (2, lambda q=q: ids["cs"].append(cs_load(a, q, True))))
    S(CSS + 24, lambda: ids["cs"].append(st_load(a, True, 0)))
    S(CSS + 27, lambda: ids["cs"].append(st_load(a, True, 1)))
    for q in range(4): S(84 + 4 * q, (2, lambda q=q: (a(f"s_add_u32 s33, s62, {8192*q}"), a.vm(f"buffer_load_dwordx4 a[{104+4*q}:{107+4*q}], v34, s[8:11], s33 offen"))))
    S(100, lambda: a.vm("buffer_load_short_d16_hi a120, v35, s[4:7], s63 offen"))
    S(104, lambda: a.vm("buffer_load_short_d16_hi a121, v35, s[4:7], s63 offen offset:64"))
    def cs_check_ops():
        r = ["v_min_u32 v22, v19, v55", "v_max_u32 v23, v19, v55"]
        for q in range(0, 8, 2): r += [f"v_min3_u32 v22, v{98+4*q}, v{102+4*q}, v22", f"v_max3_u32 v23, v{98+4*q}, v{102+4*q}, v23"]
        return r + ["v_xor_b32 v22, s27, v22", "v_xor_b32 v23, s27, v23", "v_or_b32 v22, v22, v23"]
    CK = CSS + int(opt("ckd", "56"))
    S(CK, lambda: a.wait(vm=ids["cs"]), *cs_check_ops())
    S(CK, "v_cmp_ne_u32 vcc, 0, v22\ns_cbranch_vccnz L_cs_slow\nL_cs_ok:")
    tail("L_cs_slow:"); bound(tail, "L_cs_ok")
    for q in range(8): cs_load(tail, q, False)
    st_load(tail, False, 0); st_load(tail, False, 1); tail("s_waitcnt vmcnt(0)")
    for t in cs_check_ops(): tail(t)
    tail("v_cmp_ne_u32 vcc, 0, v22\ns_cbranch_vccnz L_cs_slow\ns_branch L_cs_ok")
    for q in (0, 2, 4, 6): S(CK, f"v_add_f32 v{96+4*q}, v{96+4*q}, v{100+4*q}", f"v_add_f32 v{97+4*q}, v{97+4*q}, v{101+4*q}")
    for q in (0, 4): S(CK, f"v_add_f32 v{96+4*q}, v{96+4*q}, v{104+4*q}", f"v_add_f32 v{97+4*q}, v{97+4*q}, v{105+4*q}")
    S(CK, "v_add_f32 v96, v96, v112", "v_add_f32 v98, v97, v113", "v_mov_b32 v97, v96", "v_mov_b32 v99, v98", "v_mov_b32 v30, v52", "v_mov_b32 v31, v53",
      "v_permlane32_swap_b32 v96, v97", "v_permlane32_swap_b32 v98, v99", "v_cvt_pk_bf16_f32 v92, -v16, -v16", "v_cmp_gt_u32 vcc, 32, v0",
      "v_add_f32 v96, v96, v97", "v_add_f32 v98, v98, v99", "v_cndmask_b32 v92, v93, v92, vcc",
      "v_cvt_pk_bf16_f32 v22, v96, v98", "v_lshlrev_b32 v97, 16, v22", "v_and_b32 v99, 0xffff0000, v22", "v_sub_f32 v96, v96, v97", "v_sub_f32 v98, v98, v99",
      "v_cvt_pk_bf16_f32 v22, v97, v96", "v_cvt_pk_bf16_f32 v23, v99, v98", lambda: a.ds("ds_write2_b32 v32, v22, v23 offset0:0 offset1:32"),
      lambda: a.ds("ds_write_b32 v27, v17"), (0, lambda: ids.__setitem__("cs_done", cur[0])))
    RE, IM = ACC, ACC + 16
    p1 = []
    for r in range(16):
        p1 += [f"v_mul_f32 v{RE+r}, v{RE+r}, v{96+r}", f"v_mul_f32 v{IM+r}, v{IM+r}, v{96+r}"]
        if r >= 1:
            s_ = (RE, IM) if r == 1 else ((52, 53) if r & 1 else (54, 55)); d_ = 54 if r & 1 else 52
            p1 += cmul_acc(d_, d_ + 1, 44, 45, s_[0], s_[1], RE + r, IM + r)
    p1 += L(f"""v_and_b32 v22, 31, v0
    v_lshrrev_b32 v23, 5, v0
    v_lshlrev_b32 v24, 3, v22
    v_add_u32 v24, {ELL}, v24
    v_lshl_add_u32 v25, v23, 8, v24
    s_lshl_b32 s33, s26, 9
    v_add_u32 v25, s33, v25""")
    S(237, *p1)
    side.sort(key=lambda t: t[0])
    cur = [0]
    stamp(a, 1)
    a.wait(vm=dma_ids[0]); a("s_barrier")
    stamp(a, 2, True)
    while rq and need[rq[0]["k"]] < 8:
        r = rq.pop(0); frag[r["k"]]["ids"].append(a.ds(r["t"]))
    vq = [(2 * n, cst, f, dma_ids[2]) for n, (cst, f) in enumerate(dma_ops(2))]
    b2 = []
    ph_shift = lambda i: 1 if (i % 32) >= 24 else 0
    for i, (txt, keys) in enumerate(slots):
        cur[0] = i
        n0 = len(a.lines)
        if any(x in a.lgq for kx in keys for x in frag[kx]["ids"]):
            LA = 8 if (STY and i < 224) else 3
            la = [x for q in range(i, min(i + LA, NS)) for kx in slots[q][1] for x in frag[kx]["ids"]]
            a.wait(lg=la)
        for kx in keys:
            assert len(frag[kx]["ids"]) == len(frag[kx]["txt"]), (i, kx)
        a(txt)
        n0 += 1
        c = [q for q in BAR if BAR[q] == i]
        if c:
            c = c[0]
            assert not [v for v in vq if v[3] is not b2], (c, len(vq))
            assert not [r for r in rq if frag[r["k"]]["stage"] <= c]
            a.wait(vm=dma_ids[c + 1], lg=list(a.lgq)); a("s_barrier")
            if c + 3 < 8: vq += [(i + 1 + int(2.6 * n), cst, f, dma_ids[c + 3]) for n, (cst, f) in enumerate(dma_ops(c + 3))]
            if c == 5:
                for n, f in enumerate(b2_ops([32, 33, 34] + list(range(0, 24)))):
                    vq.append((max(i + 1 + int(B2P * n), BAR[6] + 1 if n >= 15 else 0), 3, f, b2))
        used = lambda: len([l for l in a.lines[n0:] if not l.endswith(":")])
        nr = 0
        ph = i % 8
        rgap = (ph < 5 if ph_shift(i) == 0 else 1 <= ph < 6) if (STY and i < 224) else True
        while rq and rq[0]["e"] <= i:
            urgent = any(sum(1 for r in rq if r["dl"] <= d) > (3 if STY else 2) * (d - i) for d in {r["dl"] for r in rq[:16]})
            cap = (3 if (rgap or urgent) else 0) if (STY and i < 224) else (3 if urgent else 2)
            if nr >= cap: break
            r = rq.pop(0); frag[r["k"]]["ids"].append(a.ds(r["t"])); nr += 1
            assert r["dl"] >= i - 1, (i, r)
        if STY and i < 224: vok = vq and vq[0][0] <= i + 2 and (nr == 0 or (i < 25 and nr < 9 and ph == 4))
        else: vok = vq and vq[0][0] <= i and (used() + vq[0][1] <= BUD + 1 or vq[0][0] <= i - 2)
        if vok and vq[0][3] is b2 and vq[0][0] >= BAR[6] + 1 and i <= BAR[6]: vok = False
        if vok:
            _, _, f, sink = vq.pop(0); sink.append(f())
        sb = BUD + (2 if i >= 237 else 0)
        while side and side[0][0] <= i and (used() + side[0][1] <= sb or used() == 0):
            side.pop(0)[2]()
        if i % 32 == 31 and i < 224: stamp(a, 20 + i // 32, True)
    assert ids["cs_done"] < BAR[6], ids["cs_done"]
    sys.stderr.write(f"left: side {len(side)} vq {len(vq)} cs_done {ids['cs_done']}\n")
    stamp(a, 3, True)
    for it in side: it[2]()
    pend = [v[2] for v in vq]
    def b2pop(n=1):
        for _ in range(n):
            if pend: b2.append(pend.pop(0)())
    a.ds("ds_write_b64 v25, v[54:55]")
    K0c = -2 * math.sqrt(2 / math.pi) * LOG2E
    a(f"""v_mov_b32 v60, {fhex(K0c)}
    v_mov_b32 v61, {fhex(K0c)}
    v_mov_b32 v62, {fhex(K0c*0.044715)}
    v_mov_b32 v63, {fhex(K0c*0.044715)}""")
    a.wait_lg0(); a("s_barrier")
    EL = 100
    for j in range(8): a.ds(f"ds_read_b64 v[{EL+2*j}:{EL+2*j+1}], v24 offset:{256*j}")
    a(f"""s_lshl_b32 s33, s24, 2
    s_add_u32 s97, s33, s26
    s_mul_i32 s45, s97, {150*1024}
    s_add_u32 s45, s45, {WS_A2}
    s_lshl_b32 s33, s28, 11
    s_add_u32 s3, s33, s45
    s_lshl_b32 s33, s25, 13
    s_add_u32 s33, s33, {WS_EB}
    s_add_u32 s4, s70, s33
    s_addc_u32 s5, s71, 0
    s_mov_b32 s6, 8192
    s_lshl_b32 s47, s24, 9""")
    pend += b2_ops(list(range(24, 32)))
    a("s_cmp_lg_u32 s26, 0\ns_cbranch_scc1 L_nopub\nv_mov_b32 v98, s27\nv_mov_b32 v99, s27\nv_lshlrev_b32 v26, 4, v22")
    a("s_waitcnt lgkmcnt(0)")
    for j in range(1, 8):
        s_ = EL if j == 1 else (52 if j & 1 else 96); d_ = 96 if j & 1 else 52
        em(cmul_acc(d_, d_ + 1, 46, 47, s_, s_ + 1, EL + 2 * j, EL + 2 * j + 1))
    a("""s_mov_b64 exec, 0xffffffff
    buffer_store_dwordx4 v[96:99], v26, s[4:7], s47 offen sc1
    s_mov_b64 exec, -1
L_nopub:""")
    stamp(a, 4)
    while len(pend) > 8: b2pop()
    TB = 160
    def t_loads(x, track):
        r = []
        for j in range(8):
            x(f"v_subrev_u32 v28, {1024*j}, v26")
            s = f"buffer_load_dwordx4 v[{TB+4*j}:{TB+4*j+3}], v28, s[4:7], 0 offen sc1"
            r.append(x.vm(s) if track else x(s))
        return r
    def t_check(x, lab):
        x("v_mov_b32 v29, 0")
        pr = lambda j: f"s[{48+2*(j%3)}:{49+2*(j%3)}]"
        for j in range(10):
            if j < 8: x(f"v_cmp_eq_u32 {pr(j)}, s27, v{TB+4*j+2}")
            else: x("s_nop 0")
            if j >= 2: x(f"v_addc_co_u32 v29, vcc, 0, v29, {pr(j-2)}")
        x(f"v_cmp_ne_u32 vcc, v27, v29\ns_cbranch_vccnz {lab}")
    for fb in range(3):
        G, U = ACC + 32 + 32 * fb, ACC + 48 + 32 * fb
        if fb == 0: a("s_cmp_lg_u32 s29, 0\ns_cbranch_scc1 L_skip0")
        if fb == 2:
            a(f"""s_sub_u32 s33, s47, 512
            v_lshlrev_b32 v27, 4, v22
            v_add_u32 v26, s33, v27
            v_lshlrev_b32 v28, 9, v23
            v_sub_u32 v26, v26, v28
            s_add_u32 s33, s24, 1
            v_sub_u32 v27, s33, v23
            v_lshrrev_b32 v27, 1, v27""")
            tl = t_loads(a, True)
            stamp(a, 43)
        for e in range(2):
            T = [32 + 2 * i for i in range(4)]
            g = [G + 8 * e + 2 * i for i in range(4)]; u = [U + 8 * e + 2 * i for i in range(4)]
            for i in range(4): a(f"v_pk_mul_f32 {P(g[i])}, {P(g[i])}, v[16:17] op_sel:[0,1]")
            if fb == 1 and B2E == "gelu": b2pop(2)
            for i in range(4): a(f"v_pk_mul_f32 {P(T[i])}, {P(g[i])}, {P(g[i])}")
            for i in range(4): a(f"v_pk_fma_f32 {P(T[i])}, {P(T[i])}, v[62:63], v[60:61]")
            for i in range(4): a(f"v_pk_mul_f32 {P(T[i])}, {P(T[i])}, {P(g[i])}")
            for i in range(4): a(f"v_exp_f32 v{T[i]}, v{T[i]}\nv_exp_f32 v{T[i]+1}, v{T[i]+1}\nv_pk_mul_f32 {P(u[i])}, {P(u[i])}, {P(g[i])}")
            for i in range(4): a(f"v_pk_fma_f32 {P(T[i])}, {P(T[i])}, v[18:19], v[18:19] op_sel_hi:[1,0,0]")
            for i in range(4): a(f"v_rcp_f32 v{T[i]}, v{T[i]}\nv_rcp_f32 v{T[i]+1}, v{T[i]+1}")
            if fb == 1 and B2E == "gelu": b2pop(2)
            for i in range(4): a(f"v_pk_mul_f32 {P(u[i])}, {P(u[i])}, {P(T[i])}")
            for i in range(4): a(f"v_cvt_pk_bf16_f32 v{G+8*e+i}, v{u[i]}, v{u[i]+1}")
            off = 2048 * fb + 1024 * e
            if off == 4096: a("s_add_u32 s3, s3, 4096")
            s_ = f"buffer_store_dwordx4 v[{G+8*e}:{G+8*e+3}], v15, s[20:23], s3 offen offset:{off & 4095} sc1"
            if fb == 0: a(s_)
            else: ids["hf"] = a.vm(s_)
        if fb == 0: a("L_skip0:")
        stamp(a, 40 + fb)
    stamp(a, 5)
    XR, SK, MM, RR = 64, 192, 224, 240
    a(f"""s_cmp_eq_u32 s30, 0
    s_cbranch_scc1 L_nox
    s_lshl_b32 s33, s26, 8
    s_add_u32 s33, s33, {CSL}
    v_lshl_add_u32 v8, v22, 2, s33
    v_lshl_add_u32 v9, v23, 6, s33
    ds_write2_b32 v8, v30, v31 offset0:0 offset1:32
    s_add_u32 s33, s37, {TSC}
    v_add_u32 v8, s33, v15
    v_lshlrev_b32 v24, 1, v22
    v_lshl_add_u32 v11, v23, 14, v24      ; h*16*1024 + n*2
    v_lshl_add_u32 v12, v23, 11, v24
    v_add_u32 v12, s33, v12""")
    for q in range(4): a(f"ds_write_b128 v8, a[{104+4*q}:{107+4*q}] offset:{1024*q}")
    a("v_accvgpr_read_b32 v6, a120\nv_accvgpr_read_b32 v7, a121\ns_waitcnt lgkmcnt(0)")
    for q in range(8): a(f"ds_read_b128 v[{MM+4*q}:{MM+3+4*q}], v9 offset:{128*(q>>2) + 16*(q&3)}")
    for t in range(32):
        nb, r = divmod(t, 16)
        a(f"ds_read_u16 v{XR+t}, v12 offset:{128*r+64*nb}")
        if t >= 6: a(f"s_waitcnt lgkmcnt(6)\nv_lshlrev_b32 v{XR+t-6}, 16, v{XR+t-6}" if t % 2 == 0 else f"v_lshlrev_b32 v{XR+t-7}, 16, v{XR+t-7}" if False else "")
    a("s_waitcnt lgkmcnt(0)")
    for t in range(32):
        if not (t <= 24 and t % 2 == 0): a(f"v_lshlrev_b32 v{XR+t}, 16, v{XR+t}")
    for nb in range(2):
        for r in range(0, 16, 2): a(f"v_pk_add_f32 {P(SK+16*nb+r)}, {P(XR+16*nb+r)}, {P(MM+r)} neg_lo:[0,1] neg_hi:[0,1]")
        for r in range(0, 16, 2): a(f"v_pk_mul_f32 {P(SK+16*nb+r)}, {P(SK+16*nb+r)}, {P(RR+r)}")
        for r in range(0, 16, 2): a(f"v_pk_mul_f32 {P(SK+16*nb+r)}, {P(SK+16*nb+r)}, v[6:7] " + ("op_sel_hi:[1,0]" if nb == 0 else "op_sel:[0,1]"))
    a("L_nox:")
    stamp(a, 48)
    a.lgq = []
    a.wait(vm=tl)
    a("s_waitcnt lgkmcnt(0)")
    stamp(a, 44)
    t_check(a, "L_t_slow"); a("L_t_ok:")
    stamp(a, 45)
    tail("L_t_slow:"); bound(tail, "L_t_ok"); t_loads(tail, False); tail("s_waitcnt vmcnt(0)"); t_check(tail, "L_t_slow"); tail("s_branch L_t_ok")
    for n, j in enumerate(range(6, -1, -1)):
        s_ = (TB + 28) if n == 0 else (52 if n % 2 == 0 else 54); d_ = 54 if n % 2 == 0 else 52
        em(cmul_acc(d_, d_ + 1, 58, 59, s_, s_ + 1, TB + 4 * j, TB + 4 * j + 1))
    a(f"""v_mov_b32 v56, v54
    v_mov_b32 v57, v55
    s_lshl_b32 s33, s97, 4
    s_add_u32 s33, s33, s25
    v_permlane32_swap_b32 v54, v56
    v_permlane32_swap_b32 v55, v57
    s_lshl_b32 s44, s33, 7
    s_add_u32 s33, s44, {WS_FF}
    v_mov_b32 v20, s27
    v_mov_b32 v21, 0""")
    a.wait(vm=ids["hf"])
    a("s_mov_b64 exec, 1\nbuffer_store_dword v20, v21, s[20:23], s33 offen sc1\ns_mov_b64 exec, -1")
    stamp(a, 46)
    em(cmul_acc(52, 53, 48, 49, 56, 57, 54, 55))
    a("s_lshl_b32 s33, s26, 1\nv_add_u32 v26, s33, v23\nv_mov_b32 v56, v52\nv_mov_b32 v57, v53")
    for j in range(7):
        s_, d_ = (52, 54) if j % 2 == 0 else (54, 52)
        a(f"v_cmp_eq_u32 vcc, {j+1}, v26")
        em(cmul_acc(d_, d_ + 1, 46, 47, s_, s_ + 1, EL + 2 * j, EL + 2 * j + 1))
        a(f"v_cndmask_b32 v56, v56, v{d_}, vcc\nv_cndmask_b32 v57, v57, v{d_+1}, vcc")
        if j % 2 == 1: b2pop()
    stamp(a, 47)
    def cscale(q):
        a(f"""v_pk_mul_f32 {P(160+q)}, {P(RE+q)}, v[50:51] op_sel_hi:[1,0]
        v_pk_mul_f32 {P(176+q)}, {P(IM+q)}, v[50:51] op_sel_hi:[1,0]
        v_pk_fma_f32 {P(160+q)}, {P(IM+q)}, v[50:51], {P(160+q)} op_sel:[0,1,0] neg_lo:[0,1,0] neg_hi:[0,1,0]
        v_pk_fma_f32 {P(176+q)}, {P(RE+q)}, v[50:51], {P(176+q)} op_sel:[0,1,0] neg_lo:[0,1,1] neg_hi:[0,1,1]""")
    def hcvt(q):
        a(f"v_cvt_pk_bf16_f32 v{96+q//2}, v{160+q}, v{161+q}\nv_cvt_pk_bf16_f32 v{104+q//2}, v{176+q}, v{177+q}")
    a(f"""v_lshlrev_b32 v24, 6, v22
    v_lshl_add_u32 v24, v23, 5, v24
    s_add_u32 s33, s37, {TSC}
    v_add_u32 v24, s33, v24
    v_bfe_u32 v25, v0, 2, 2
    v_lshl_add_u32 v25, v23, 3, v25
    v_lshlrev_b32 v25, 6, v25
    v_and_b32 v26, 1, v0
    v_lshl_add_u32 v25, v26, 5, v25
    v_bfe_u32 v26, v0, 4, 1
    v_lshl_add_u32 v25, v26, 4, v25
    v_bfe_u32 v26, v0, 1, 1
    v_lshl_add_u32 v25, v26, 3, v25
    v_add_u32 v25, s33, v25""")
    for r in range(16):
        hr, hi = (56, 57) if r == 0 else (RE + r - 1, IM + r - 1)
        em(cmul_acc(RE + r, IM + r, 44, 45, hr, hi, RE + r, IM + r))
        if r >= 2 and r % 2 == 0: cscale(r - 2)
        if r >= 4 and r % 2 == 0: hcvt(r - 4)
        if r == 11:
            for m in range(2): a.ds(f"ds_write_b128 v24, v[{96+8*m}:{99+8*m}] offset:{2048*m}")
        if r in (1, 4, 7, 10, 13): b2pop()
    cscale(14); hcvt(12); hcvt(14)
    assert not pend
    for m in range(2): a.ds(f"ds_write_b128 v24, v[{100+8*m}:{103+8*m}] offset:{2048*m+16}")
    stamp(a, 49)
    a(f"s_lshl_b32 s33, s25, 12\ns_add_u32 s33, s33, {86*1024}\ns_add_u32 s33, s33, s45")
    a.wait_lg0()
    hr_ = []
    for m in range(2):
        for s in range(2):
            for e in range(2):
                d = 112 + 4 * (2 * m + s) + 2 * e
                hr_.append(a.ds(f"ds_read_b64_tr_b16 v[{d}:{d+1}], v25 offset:{2048*m + 1024*s + 256*e}"))
    if STAMPS: a.wait_lg0()
    for y in range(4):
        a.wait(lg=hr_[2 * y + 1])
        a(f"buffer_store_dwordx4 v[{112+4*y}:{115+4*y}], v15, s[20:23], s33 offen offset:{1024*y} sc1")
    stamp(a, 6)
    a(f"""s_lshl_b32 s33, s31, 2
    s_add_u32 s97, s33, s26              ; row block of phase 2
    s_mul_i32 s45, s97, {150*1024}
    s_add_u32 s45, s45, {WS_A2}
    s_lshl_b32 s34, s31, 3
    s_add_u32 s34, s34, s32
    s_lshl_b32 s34, s34, 2
    s_add_u32 s34, s34, s26          ; (rt*8+ct)*4+w
    s_lshl_b32 s35, s34, 7
    s_add_u32 s35, s35, {WS_FY}      ; y flag offset
    s_lshl_b32 s34, s34, 13
    s_add_u32 s34, s34, {WS_YB}      ; y tile offset
    s_lshl_b32 s36, s97, 11
    s_cmp_eq_u32 s30, 0
    s_cselect_b32 s33, {WS_FH}, 0
    s_cselect_b32 s3, 0, {WS_FF}
    s_add_u32 s36, s36, s33
    s_add_u32 s36, s36, s3           ; flags to wait for
    v_and_b32 v2, 15, v0
    v_lshlrev_b32 v2, 7, v2
    s_cbranch_scc1 L_adrY
    v_lshlrev_b32 v22, 9, v23
    v_bfe_u32 v23, v0, 2, 2
    v_lshl_add_u32 v22, v23, 6, v22
    v_bfe_u32 v23, v0, 4, 1
    v_lshl_add_u32 v22, v23, 5, v22
    v_and_b32 v23, 3, v0
    v_lshl_add_u32 v8, v23, 3, v22
    v_add_u32 v9, 0x10000, v8
    v_add_u32 v10, 0x20000, v8
    s_lshl_b32 s33, s101, 11
    s_add_u32 s38, s33, s45
    s_add_u32 s39, s45, {42*2048}
    s_branch L_adrJ""".replace("s_cbranch_scc1 L_adrY", "s_cmp_eq_u32 s30, 0\n    s_cbranch_scc1 L_adrY"))
    a("L_adrY:")
    for s in range(4):
        a(f"v_mov_b32 v{4+s}, v{BA(0,s)}\nv_add_u32 v{8+s}, 0x10000, v{BA(0,s)}\nv_add_u32 v{16+s}, 0x20000, v{BA(0,s)}")
    a(f"s_add_u32 s45, s45, {86*1024}\ns_lshl_b32 s33, s101, 13\ns_add_u32 s38, s33, s45\nL_adrJ:")
    a(f"s_add_u32 s33, s44, {WS_FH}")
    a.wait_vm0()
    a("s_mov_b64 exec, 1\nbuffer_store_dword v20, v21, s[20:23], s33 offen sc1\ns_mov_b64 exec, -1")
    a("buffer_load_dword v3, v2, s[20:23], s36 offen sc1")
    a("s_barrier")
    stamp(a, 7)
    a("s_waitcnt vmcnt(0)\nv_cmp_ne_u32 vcc, s27, v3\ns_cbranch_vccz L_pollAx")
    a("L_pollA:"); bound(a, "L_pollAx")
    a("""buffer_load_dword v3, v2, s[20:23], s36 offen sc1
    s_waitcnt vmcnt(0)
    v_cmp_ne_u32 vcc, s27, v3
    s_cbranch_vccnz L_pollA
L_pollAx:""")
    stamp(a, 8)
    a("s_cmp_eq_u32 s30, 0\ns_cbranch_scc1 L_roleY")
    NA = 24
    def role(isD):
        nks = 86 if isD else 64
        a.vmq = []; a.lgq = []
        aid = {}
        def aload(k):
            if isD:
                if k == 84: a("s_mov_b32 s38, s39")
                elif k % 4 == 0 and k: a(f"s_add_u32 s38, s38, 4096\ns_cmp_ge_u32 s38, s39\ns_cselect_b32 s38, s45, s38")
            else:
                if k % 8 == 0 and k:
                    a(f"s_add_u32 s101, s101, 1\ns_and_b32 s101, s101, 7\ns_lshl_b32 s33, s101, 13\ns_add_u32 s38, s33, s45")
                elif k % 4 == 0 and k: a("s_add_u32 s38, s38, 4096")
            r = 4 * (k % NA)
            aid[k] = a.vm(f"buffer_load_dwordx4 a[{r}:{r+3}], v15, s[20:23], s38 offen offset:{1024*(k&3)} {ASC}")
        nxa = [0]
        def anext(k):
            if nxa[0] < nks and nxa[0] < k + NA: aload(nxa[0]); nxa[0] += 1
        for _ in range(NA0): anext(0)
        def breads(k):
            b = 96 + 8 * (k % 3)
            r = []
            for nb in range(2):
                if isD:
                    for e2 in range(2):
                        off = LB(k >> 1) + (k & 1) * 2048 + e2 * 1024 + nb * 256
                        d = b + 4 * nb + 2 * e2
                        r.append(f"ds_read_b64_tr_b16 a[{d}:{d+1}], v{8 + (off >> 16)} offset:{off & 0xffff}")
                else:
                    i, ks = divmod(k, 8)
                    off = LB(4 * i + 2 * nb + ((ks >> 1) & 1))
                    sp = 2 * (ks >> 2) + (ks & 1)
                    r.append(f"ds_read_b128 a[{b+4*nb}:{b+4*nb+3}], v{(4, 8, 16)[off >> 16] + sp} offset:{off & 0xffff}")
            return r
        if STAMPS: a("s_waitcnt lgkmcnt(0)")
        bid = {}
        for k in range(2): bid[k] = [a.ds(r) for r in breads(k)]
        extra = []; r2ids = []
        R1K, R2K = 8, 66
        for k in range(nks):
            a.wait(vm=aid[k], lg=bid[k])
            A = f"a[{4*(k%NA)}:{4*(k%NA)+3}]"
            b = 96 + 8 * (k % 3)
            nxt = breads(k + 2) if k + 2 < nks else []
            for nb in range(2):
                D = f"v[{128+16*nb}:{143+16*nb}]"
                a(f"v_mfma_f32_32x32x16_bf16 {D}, {A}, a[{b+4*nb}:{b+4*nb+3}], {'0' if k == 0 else D}")
                if nb == 0:
                    if isD and k == R1K:
                        a("s_barrier")
                        extra = [lambda f=f: r2ids.append(f()) for f in b2_ops(list(range(35, 43)))]
                    if isD and k == R2K:
                        a.wait(vm=r2ids); a("s_barrier")
                    bid[k + 2] = [a.ds(r) for r in nxt]
                else:
                    anext(k + 1); anext(k + 1)
                    if extra and k % 4 == 2 and k > 16: extra.pop(0)()
                    if isD and k == 74: fl = a.vm("buffer_load_dword v3, v21, s[20:23], s35 offen sc1")
            if k == 8: stamp(a, 9, True)
        assert not extra
        stamp(a, 10)
        if not isD:
            a("s_nop 15")
            for j in range(8):
                if j == 4: a("s_add_u32 s34, s34, 4096")
                a(f"buffer_store_dwordx4 v[{128+4*j}:{131+4*j}], v15, s[20:23], s34 offen offset:{1024*(j&3)} sc1")
            a("""s_waitcnt vmcnt(0)
            s_mov_b64 exec, 1
            buffer_store_dword v20, v21, s[20:23], s35 offen sc1
            s_mov_b64 exec, -1""")
            stamp(a, 11); stamp(a, 12)
        else:
            a(f"""v_mov_b32 v60, {fhex(-LOG2E)}
            v_mov_b32 v61, {fhex(-LOG2E)}
            v_mov_b32 v62, 1.0
            v_mov_b32 v63, 1.0""")
            a.wait_vm0()
            a("""v_cmp_eq_u32 vcc, s27, v3
            s_cbranch_vccnz L_yok
L_polly:""")
            bound(a, "L_yok")
            a("""buffer_load_dword v3, v21, s[20:23], s35 offen sc1
            s_waitcnt vmcnt(0)
            v_cmp_ne_u32 vcc, s27, v3
            s_cbranch_vccnz L_polly
L_yok:""")
            yid = []
            for j in range(8):
                if j == 4: a("s_add_u32 s34, s34, 4096")
                yid.append(a.vm(f"buffer_load_dwordx4 v[{160+4*j}:{163+4*j}], v15, s[20:23], s34 offen offset:{1024*(j&3)} sc1"))
            stamp(a, 11)
            srd(a, 8, "s66", "s67", 4194304)
            a("v_lshlrev_b32 v11, 1, v11\ns_lshl_b32 s28, s62, 1")
            def silu(grp):
                d = [128 + 8 * grp + 2 * i for i in range(4)]; T = [32 + 2 * i for i in range(4)]
                for i in range(4): a(f"v_pk_mul_f32 {P(T[i])}, {P(d[i])}, v[60:61]")
                for i in range(4): a(f"v_exp_f32 v{T[i]}, v{T[i]}\nv_exp_f32 v{T[i]+1}, v{T[i]+1}")
                for i in range(4): a(f"v_pk_add_f32 {P(T[i])}, {P(T[i])}, v[62:63]")
                for i in range(4): a(f"v_rcp_f32 v{T[i]}, v{T[i]}\nv_rcp_f32 v{T[i]+1}, v{T[i]+1}")
                for i in range(4): a(f"v_pk_mul_f32 {P(d[i])}, {P(d[i])}, {P(T[i])}")
            def fin(grp):
                nb = grp >> 1
                for r in range(8 * (grp & 1), 8 * (grp & 1) + 8, 2):
                    y = 160 + 16 * nb + r
                    a.wait(vm=yid[4 * nb + r // 4])
                    a(f"v_pk_add_f32 {P(y)}, {P(y)}, {P(SK+16*nb+r)}")
                    a(f"v_pk_fma_f32 {P(y)}, {P(y)}, {P(128+16*nb+r)}, {P(XR+16*nb+r)}")
                    a(f"s_add_u32 s24, s28, {2048*r}")
                    a.vm(f"buffer_store_dword v{y}, v11, s[8:11], s24 offen offset:{128*nb} {OSC}")
                    a.vm(f"buffer_store_dword v{y+1}, v11, s[8:11], s24 offen offset:{128*nb+2048} {OSC}")
            silu(0); silu(1); fin(0); silu(2); fin(1); silu(3); fin(2); fin(3)
            a(f"""s_cmp_lg_u32 s97, 0
            s_cbranch_scc1 L_noep
            s_cmp_lg_u32 s32, 0
            s_cbranch_scc1 L_noep
            v_mov_b32 v20, s46
            s_mov_b64 exec, 1
            buffer_store_dword v20, v21, s[20:23], 0 offen offset:{WS_EPOCH}
L_noep:""")
            stamp(a, 12)
        if STAMPS:
            a("s_waitcnt vmcnt(0)"); stamp(a, 13)
        stamp_out(a)
        a("s_endpgm")
    role(True)
    a("L_roleY:")
    role(False)
    return a.text() + tail.text() + "L_codeend:\n    s_endpgm\n"

def main():
    K = NAME + "_kernel"
    hdr = f"""; S5 SSM (exact chunked scan) + GEGLU FFN gate + residual: one fused launch for gfx950 (text produced by my generator script)
; @launch grid=(256,1,1) block=(256,1,1) lds=163840
.amdgcn_target "amdgcn-amd-amdhsa--gfx950"
.text
"""
    body = gen()
    for m in lint(body): sys.stderr.write("LINT " + m + "\n")
    tail = f""".section .rodata,"a"
.p2align 6
.amdhsa_kernel {K}
  .amdhsa_next_free_vgpr 464
  .amdhsa_next_free_sgpr 102
  .amdhsa_accum_offset 256
  .amdhsa_group_segment_fixed_size 0
  .amdhsa_kernarg_size 128
  .amdhsa_user_sgpr_count 2
  .amdhsa_user_sgpr_kernarg_segment_ptr 1
  .amdhsa_system_sgpr_workgroup_id_x 1
  .amdhsa_float_denorm_mode_32 3
.end_amdhsa_kernel
"""
    print(hdr + body + tail)
main()
```
